```python
import torch

def _softmax(x, axis=-1):
    return torch.softmax(x, dim=axis)
def _gelu(x):
    return torch.nn.functional.gelu(x, approximate="tanh")
def _silu(x):
    return torch.nn.functional.silu(x)
def _sigmoid(x):
    return torch.sigmoid(x)
def _layernorm(x, axis=-1, eps=1e-5):
    m = x.mean(dim=axis, keepdim=True)
    v = x.var(dim=axis, keepdim=True, unbiased=False)
    return (x - m) / torch.sqrt(v + eps)
def _scatter_add(tgt, idx, src, axis=0):
    return tgt.clone().index_add_(axis, idx, src)
def _segment_sum(src, seg, n):
    out = torch.zeros((n,) + src.shape[1:], dtype=src.dtype)
    return out.index_add_(0, seg, src)
def _pad(x, pw):
    flat = tuple(v for pair in reversed(pw) for v in pair)
    return torch.nn.functional.pad(x, flat)

kernel_name = 'sequential_preLN__grouped_kv_mqa__geglu_ffn__prompt'

def setup_inputs():

    _w = (lambda a: (lambda t: t.to(torch.bfloat16) if t.is_floating_point() else t)(torch.as_tensor(a)))
    def _A_setup():
        B, S, D, H = 1, 2048, 640, 32
        Dh = D // H
        return {
            "x": _w((lambda *s: torch.randn(*s, dtype=torch.bfloat16) * 0.05)(B, S, D)),
            "wq": _w((lambda *s: torch.randn(*s, dtype=torch.bfloat16) * 0.05)(D, H * Dh)),
            "wk": _w((lambda *s: torch.randn(*s, dtype=torch.bfloat16) * 0.05)(D, Dh)),
            "wv": _w((lambda *s: torch.randn(*s, dtype=torch.bfloat16) * 0.05)(D, Dh)),
            "wo": _w((lambda *s: torch.randn(*s, dtype=torch.bfloat16) * 0.05)(H * Dh, D)),
        }
    _A_in = _A_setup()

    def _B_setup():
        B, S, D, F = 1, 2048, 640, 1536
        return {
            "x": _w((lambda *s: torch.randn(*s, dtype=torch.bfloat16) * 0.05)(B, S, D)),
            "w_gate": _w((lambda *s: torch.randn(*s, dtype=torch.bfloat16) * 0.05)(D, F)),
            "w_up": _w((lambda *s: torch.randn(*s, dtype=torch.bfloat16) * 0.05)(D, F)),
            "w_down": _w((lambda *s: torch.randn(*s, dtype=torch.bfloat16) * 0.05)(F, D)),
        }
    _B_in = _B_setup()

    return {
        "A_x": _A_in["x"],
        "A_wq": _A_in["wq"],
        "A_wk": _A_in["wk"],
        "A_wv": _A_in["wv"],
        "A_wo": _A_in["wo"],
        "B_x": _B_in["x"],
        "B_w_gate": _B_in["w_gate"],
        "B_w_up": _B_in["w_up"],
        "B_w_down": _B_in["w_down"],
    }

def reference(A_x, A_wq, A_wk, A_wv, A_wo, B_x, B_w_gate, B_w_up, B_w_down):
    def _A_ref(x, wq, wk, wv, wo):
        B, S, D = x.shape
        H = 32
        Dh = D // H
        q = (lambda x, *d: x.permute(*d))((x @ wq).reshape(B, S, H, Dh), 0, 2, 1, 3)
        k = x @ wk
        v = x @ wv
        scores = torch.einsum("bhqd,bkd->bhqk", q, k) * (Dh ** -0.5)
        p = _softmax(scores, axis=-1)
        o = torch.einsum("bhqk,bkd->bhqd", p, v)
        return (lambda x, *d: x.permute(*d))(o, 0, 2, 1, 3).reshape(B, S, H * Dh) @ wo

    def _B_ref(x, w_gate, w_up, w_down):
        return (_gelu(x @ w_gate) * (x @ w_up)) @ w_down

    x = A_x
    h = x + _A_ref(_layernorm(x, axis=-1), A_wq, A_wk, A_wv, A_wo)
    h2 = h + _B_ref(_layernorm(h, axis=-1), B_w_gate, B_w_up, B_w_down)
    return h2
```

```python
class Asm:
    def __init__(self):
        self.lines = []
        self.uid = 0

    def e(self, s):
        self.lines.append("    " + s)

    def c(self, s):
        self.lines.append("    ; " + s)

    def lab(self, name):
        self.lines.append(name + ":")

    def newlab(self, stem):
        self.uid += 1
        return f"L_{stem}_{self.uid}"

    def nop(self, n):
        while n > 0:
            k = min(n, 16)
            self.e(f"s_nop {k-1}")
            n -= k

    def text(self):
        return "\n".join(self.lines) + "\n"


def v(i, n=1):
    return f"v{i}" if n == 1 else f"v[{i}:{i+n-1}]"


def s(i, n=1):
    return f"s{i}" if n == 1 else f"s[{i}:{i+n-1}]"


class RegAlloc:
    def __init__(self, start, limit):
        self.next = start
        self.limit = limit
        self.hw = start

    def get(self, n=1, align=None):
        if align is None:
            align = 1 if n == 1 else (2 if n == 2 else 4)
        r = (self.next + align - 1) // align * align
        self.next = r + n
        assert self.next <= self.limit, f"register overflow {self.next} > {self.limit}"
        self.hw = max(self.hw, self.next)
        return r

    def mark(self):
        return self.next

    def release(self, m):
        self.next = m


def srd(a, d, base_lo, base_hi, nbytes):
    a.e(f"s_mov_b32 s{d}, s{base_lo}")
    a.e(f"s_and_b32 s{d+1}, s{base_hi}, 0xffff")
    a.e(f"s_mov_b32 s{d+2}, {nbytes}")
    a.e(f"s_mov_b32 s{d+3}, 0x00020000")


def srd_off(a, d, base_lo, base_hi, off, nbytes):
    a.e(f"s_add_u32 s{d}, s{base_lo}, {off}")
    a.e(f"s_addc_u32 s{d+1}, s{base_hi}, 0")
    a.e(f"s_and_b32 s{d+1}, s{d+1}, 0xffff")
    a.e(f"s_mov_b32 s{d+2}, {nbytes}")
    a.e(f"s_mov_b32 s{d+3}, 0x00020000")


def kernel_desc(name, nvgpr, nsgpr=96):
    acc = (nvgpr + 3) // 4 * 4
    return f""".p2align 6
.amdhsa_kernel {name}
  .amdhsa_next_free_vgpr {nvgpr}
  .amdhsa_next_free_sgpr {nsgpr}
  .amdhsa_accum_offset {acc}
  .amdhsa_group_segment_fixed_size 0
  .amdhsa_kernarg_size 96
  .amdhsa_user_sgpr_count 2
  .amdhsa_user_sgpr_kernarg_segment_ptr 1
  .amdhsa_system_sgpr_workgroup_id_x 1
.end_amdhsa_kernel
"""
```

```python
from asmlib import v, s

S_WSRD = 16
S_XSRD = 20
S_WAVE = 40
S_WM = 41
S_WN = 42
S_WK = 45
S_XK = 46
S_WLDS = 47
S_RBUF = 48
S_LOOP = 49
S_T0 = 50
S_T1 = 51
S_T2 = 52
S_WLDS0 = 53
S_XSTG = 54
OOB = 0x40000000


class Cfg:
    pass


def gemm_engine(a, R, c):
    KSn = c.KS // 16
    NST = c.KT // c.KS
    assert NST % c.U == 0 and KSn % 2 == 0
    NW = c.WM * c.WN
    Dm = c.KS * c.C16 // 32
    D = Dm * c.nmat // NW
    assert D * NW == Dm * c.nmat and Dm % D == 0
    wpm = Dm // D
    mat1 = Dm * 1024 + (128 if c.mode == 'split' else 0)
    stage_bytes = Dm * 1024 * c.nmat + (256 if c.mode == 'split' else 0)
    c.lds_bytes = stage_bytes * c.NB
    T = c.T

    acc = [R.get(16, 4) for _ in range(T)]
    xr = [[R.get(4, 4) for _ in range(KSn)] for _ in range(c.U)]
    wf = [[R.get(4, 4) for _ in range(T)] for _ in range(2)]
    v_dma = [R.get() for _ in range(D)]
    v_rb = R.get()
    v_rd = [R.get() for _ in range(2)]
    t0 = R.get(); t1 = R.get(); t2 = R.get()
    vl = c.v_lane

    a.c("---- engine setup: DMA source offsets")
    if c.nmat > 1:
        a.e(f"s_and_b32 s{S_T0}, s{S_WAVE}, {wpm-1}") if (wpm & (wpm - 1)) == 0 else None
        assert (wpm & (wpm - 1)) == 0
        a.e(f"s_lshr_b32 s{S_T1}, s{S_WAVE}, {wpm.bit_length()-1}")
        a.e(f"s_mul_i32 s{S_WLDS0}, s{S_T1}, {mat1}")
    else:
        a.e(f"s_mov_b32 s{S_T0}, s{S_WAVE}")
        a.e(f"s_mov_b32 s{S_WLDS0}, 0")
    a.e(f"s_mul_i32 s{S_T0}, s{S_T0}, {D}")
    a.e(f"s_lshl_b32 s{S_T1}, s{S_T0}, 10")
    a.e(f"s_add_u32 s{S_WLDS0}, s{S_WLDS0}, s{S_T1}")
    a.e(f"s_lshl_b32 s{S_T0}, s{S_T0}, 3")
    for d in range(D):
        a.e(f"v_lshrrev_b32 {v(t0)}, 3, {v(vl)}")
        a.e(f"v_add_u32 {v(t0)}, s{S_T0}, {v(t0)}")
        if d:
            a.e(f"v_add_u32 {v(t0)}, {8*d}, {v(t0)}")
        if (c.C16 & (c.C16 - 1)) == 0:
            sh = c.C16.bit_length() - 1
            a.e(f"v_lshrrev_b32 {v(t1)}, {sh}, {v(t0)}")
            a.e(f"v_and_b32 {v(t2)}, {c.C16-1}, {v(t0)}")
        else:
            assert c.C16 == 6
            a.e(f"v_mul_u32_u24 {v(t1)}, 43, {v(t0)}")
            a.e(f"v_lshrrev_b32 {v(t1)}, 8, {v(t1)}")
            a.e(f"v_mul_u32_u24 {v(t2)}, 6, {v(t1)}")
            a.e(f"v_sub_u32 {v(t2)}, {v(t0)}, {v(t2)}")
        a.e(f"v_lshlrev_b32 {v(t1)}, 2, {v(t1)}")
        a.e(f"v_bfe_u32 {v(t0)}, {v(vl)}, 1, 2")
        a.e(f"v_add_u32 {v(t1)}, {v(t1)}, {v(t0)}")
        a.e(f"v_mul_u32_u24 {v(t1)}, {c.pitch}, {v(t1)}")
        a.e(f"v_lshlrev_b32 {v(t2)}, 5, {v(t2)}")
        a.e(f"v_add_u32 {v(t1)}, {v(t1)}, {v(t2)}")
        a.e(f"v_and_b32 {v(t0)}, 1, {v(vl)}")
        a.e(f"v_lshlrev_b32 {v(t0)}, 4, {v(t0)}")
        a.e(f"v_add_u32 {v(t1)}, {v(t1)}, {v(t0)}")
        a.e(f"v_add_u32 {v(v_dma[d])}, s{c.s_col0}, {v(t1)}")
    a.c("---- LDS read lane base")
    hmul = (2 if c.xorder == 'a' else 1) * c.C16 * 128
    chmul = mat1 if c.mode == 'split' else 128
    a.e(f"v_lshrrev_b32 {v(t0)}, 5, {v(vl)}")
    a.e(f"v_mul_u32_u24 {v(v_rb)}, {hmul}, {v(t0)}")
    a.e(f"v_bfe_u32 {v(t0)}, {v(vl)}, 4, 1")
    a.e(f"v_mul_u32_u24 {v(t0)}, {chmul}, {v(t0)}")
    a.e(f"v_add_u32 {v(v_rb)}, {v(v_rb)}, {v(t0)}")
    a.e(f"v_bfe_u32 {v(t0)}, {v(vl)}, 2, 2")
    a.e(f"v_lshlrev_b32 {v(t0)}, 5, {v(t0)}")
    a.e(f"v_add_u32 {v(v_rb)}, {v(v_rb)}, {v(t0)}")
    a.e(f"v_and_b32 {v(t0)}, 3, {v(vl)}")
    a.e(f"v_lshlrev_b32 {v(t0)}, 3, {v(t0)}")
    a.e(f"v_add_u32 {v(v_rb)}, {v(v_rb)}, {v(t0)}")
    if c.WN > 1:
        wterm = {'plain': 2 * T * 128, 'split': T * 128}[c.mode]
        a.e(f"s_mul_i32 s{S_T0}, s{S_WN}, {wterm}")
        a.e(f"v_add_u32 {v(v_rb)}, s{S_T0}, {v(v_rb)}")

    def tile_imm(t):
        return {'plain': 2 * t * 128, 'split': t * 128, 'permat': t * mat1}[c.mode]

    def rd_imm(s_, q, t):
        return (4 * s_ + (q if c.xorder == 'a' else 2 * q)) * c.C16 * 128 + tile_imm(t)

    queue = []

    def dma_issue(stage_tag):
        for d in range(D):
            if d == 0:
                a.e(f"s_mov_b32 m0, s{S_WLDS}")
            else:
                a.e(f"s_add_u32 m0, s{S_WLDS}, {1024*d}")
            a.e("s_nop 0")
            a.e(f"buffer_load_dwordx4 {v(v_dma[d])}, {s(S_WSRD,4)}, s{S_WK} offen lds")
        a.e(f"s_add_u32 s{S_WK}, s{S_WK}, {c.KS*c.pitch}")
        a.e(f"s_add_u32 s{S_WLDS}, s{S_WLDS}, {stage_bytes}")
        a.e(f"s_add_u32 s{S_T0}, s{S_WLDS0}, {stage_bytes*c.NB}")
        a.e(f"s_cmp_ge_u32 s{S_WLDS}, s{S_T0}")
        a.e(f"s_cselect_b32 s{S_WLDS}, s{S_WLDS0}, s{S_WLDS}")

    def x_issue(u, s_):
        imm = s_ * c.xstride
        assert imm < 4096
        a.e(f"buffer_load_dwordx4 {v(xr[u][s_],4)}, {v(c.v_xoff)}, {s(S_XSRD,4)}, s{S_XK} offen offset:{imm}")

    def x_advance():
        a.e(f"s_add_u32 s{S_XSTG}, s{S_XSTG}, 1")
        a.e(f"s_add_u32 s{S_XK}, s{S_XK}, {KSn*c.xstride}")
        if c.x_clamp:
            a.e(f"s_cmp_ge_u32 s{S_XSTG}, {NST}")
            a.e(f"s_cselect_b32 s{S_XK}, {OOB}, s{S_XK}")

    seq = []
    for st in range(max(c.NB - 1, c.U)):
        if st < c.NB - 1:
            seq += [('D', st)] * D
        if st < c.U:
            seq += [('X', st)] * KSn

    def need_count(seq, st):
        last = max(i for i, tg in enumerate(seq) if tg[1] == st and tg in (('D', st), ('X', st)))
        return len(seq) - 1 - last

    n_pro = need_count(seq, 0)
    site = {}
    for i in range(NST):
        for s_ in range(KSn):
            if s_ == KSn - 1:
                if i + 1 < NST:
                    n = need_count(seq, i + 1)
                    site[i % c.U] = min(site.get(i % c.U, 63), n)
                seq += [('D', i - 1 + c.NB)] * D
            seq += [('X', i + c.U)]
    for k_ in site:
        site[k_] = min(site[k_], 63)

    a.c("---- prologue loads")
    a.e(f"s_mov_b32 s{S_WK}, 0")
    a.e(f"s_mov_b32 s{S_XK}, 0")
    a.e(f"s_mov_b32 s{S_XSTG}, 0")
    a.e(f"s_mov_b32 s{S_WLDS}, s{S_WLDS0}")
    for st in range(max(c.NB - 1, c.U)):
        if st < c.NB - 1:
            dma_issue(st)
        if st < c.U:
            for s_ in range(KSn):
                x_issue(st, s_)
            x_advance()
    for t in range(T):
        for r in range(16):
            a.e(f"v_mov_b32 {v(acc[t]+r)}, 0")
    if getattr(c, 'pre_loop', None):
        c.pre_loop()
    a.e(f"v_mov_b32 {v(v_rd[0])}, {v(v_rb)}")
    a.e(f"s_mov_b32 s{S_RBUF}, 0")
    a.e(f"s_waitcnt vmcnt({min(n_pro,63)})")
    a.e("s_barrier")

    def rd_issue(p, s_, vaddr):
        for t in range(T):
            for q in range(2):
                a.e(f"ds_read_b64_tr_b16 {v(wf[p][t]+2*q,2)}, {v(vaddr)} offset:{rd_imm(s_,q,t)}")

    rd_issue(0, 0, v_rd[0])
    a.e(f"s_mov_b32 s{S_LOOP}, {NST//c.U}")
    L = a.newlab("kloop")
    a.lab(L)
    for u in range(c.U):
        cur = v_rd[u % 2] if c.U % 2 == 0 else v_rd[0]
        nxt = v_rd[(u + 1) % 2] if c.U % 2 == 0 else v_rd[1]
        for s_ in range(KSn):
            p = s_ % 2
            if s_ == KSn - 1:
                a.e(f"s_add_u32 s{S_RBUF}, s{S_RBUF}, {stage_bytes}")
                a.e(f"s_cmp_ge_u32 s{S_RBUF}, {stage_bytes*c.NB}")
                a.e(f"s_cselect_b32 s{S_RBUF}, 0, s{S_RBUF}")
                a.e(f"v_add_u32 {v(nxt)}, s{S_RBUF}, {v(v_rb)}")
                a.e(f"s_waitcnt vmcnt({site.get(u, 0)})")
                a.e("s_barrier")
                dma_issue(None)
                rd_issue(1 - p, 0, nxt)
            else:
                rd_issue(1 - p, s_ + 1, cur)
            a.e(f"s_waitcnt lgkmcnt({2*T})")
            for t in range(T):
                if c.swap[t]:
                    a.e(f"v_mfma_f32_32x32x16_bf16 {v(acc[t],16)}, {v(xr[u][s_],4)}, {v(wf[p][t],4)}, {v(acc[t],16)}")
                else:
                    a.e(f"v_mfma_f32_32x32x16_bf16 {v(acc[t],16)}, {v(wf[p][t],4)}, {v(xr[u][s_],4)}, {v(acc[t],16)}")
                if c.hook_w:
                    c.hook_w(t, wf[p][t])
            if c.hook_x:
                c.hook_x(xr[u][s_])
            x_issue(u, s_)
            if s_ == KSn - 1:
                x_advance()
        if c.U % 2 == 1:
            a.e(f"v_mov_b32 {v(v_rd[0])}, {v(v_rd[1])}")
    a.e(f"s_sub_u32 s{S_LOOP}, s{S_LOOP}, 1")
    a.e(f"s_cmp_lg_u32 s{S_LOOP}, 0")
    a.e(f"s_cbranch_scc1 {L}")
    a.e("s_waitcnt vmcnt(0) lgkmcnt(0)")
    a.nop(16)
    return acc
```

```python
import math
import struct
import sys
import os

sys.path.insert(0, os.path.dirname(os.path.abspath(__file__)))
from asmlib import Asm, RegAlloc, v, s, srd, srd_off, kernel_desc
from engine import (gemm_engine, Cfg, S_WSRD, S_XSRD, S_WAVE, S_WM, S_WN, S_T0, S_T1, S_T2)

NAME = "sequential_preLN__grouped_kv_mqa__geglu_ffn__prompt"

P_X, P_WQ, P_WK, P_WV, P_WO, P_BX, P_WG, P_WU, P_WD, P_OUT, P_DBG, P_WS = range(64, 88, 2)

S_TOK = 2048
D_ = 640
F_ = 1536
WS_Q = 0
WS_KV = WS_Q + S_TOK * D_ * 2
WS_O = WS_KV + 64 * 4096
WS_H = WS_O + S_TOK * D_ * 2
WS_ST = WS_H + S_TOK * D_ * 2
WS_CS = WS_ST + S_TOK * 80
WS_F = WS_CS + 16384
WS_END = WS_F + S_TOK * F_ * 2

S_RB = 43
S_CG = 44
S_COL0 = 55
S_E0 = 24
S_E1 = 28
S_E2 = 32
S_E3 = 36


def f32(x):
    return "0x%08x" % struct.unpack("<I", struct.pack("<f", x))[0]


QSCALE = (20 ** -0.5) * math.log2(math.e)
EPS = 1e-5


def header(a, name):
    a.lines.append(f".globl {name}")
    a.lines.append(".p2align 8")
    a.lines.append(f".type {name},@function")
    a.lab(name)


def load_ptrs(a):
    a.e("s_load_dwordx16 s[64:79], s[0:1], 0")
    a.e("s_load_dwordx8 s[80:87], s[0:1], 64")


def wave_ids(a, vl, WN):
    a.e(f"v_lshrrev_b32 {v(vl)}, 6, v0")
    a.e("s_nop 0")
    a.e(f"v_readfirstlane_b32 s{S_WAVE}, {v(vl)}")
    a.e(f"v_and_b32 {v(vl)}, 63, v0")
    if WN == 1:
        a.e(f"s_mov_b32 s{S_WM}, s{S_WAVE}")
        a.e(f"s_mov_b32 s{S_WN}, 0")
    else:
        assert WN == 2
        a.e(f"s_lshr_b32 s{S_WM}, s{S_WAVE}, 1")
        a.e(f"s_and_b32 s{S_WN}, s{S_WAVE}, 1")


def xhalf_add(a, x, t0, t1):
    a.e(f"v_mov_b32 {v(t0)}, {v(x)}")
    a.e(f"v_mov_b32 {v(t1)}, {v(x)}")
    a.e("s_nop 1")
    a.e(f"v_permlane32_swap_b32 {v(t0)}, {v(t1)}")
    a.e("s_nop 1")
    a.e(f"v_add_f32 {v(x)}, {v(t0)}, {v(t1)}")


def ln_stats(a, s1, s2, mu_neg, rstd, t0):
    a.e(f"v_mul_f32 {v(mu_neg)}, {f32(-1.0/D_)}, {v(s1)}")
    a.e(f"v_mul_f32 {v(t0)}, {f32(1.0/D_)}, {v(s2)}")
    a.e(f"v_fma_f32 {v(t0)}, -{v(mu_neg)}, {v(mu_neg)}, {v(t0)}")
    a.e(f"v_max_f32 {v(t0)}, 0, {v(t0)}")
    a.e(f"v_add_f32 {v(t0)}, {f32(EPS)}, {v(t0)}")
    a.e(f"v_rsq_f32 {v(rstd)}, {v(t0)}")
    a.e("s_nop 0")


def k1(a):
    name = "k1_qkv_kernel"
    header(a, name)
    L_kv, L_cs, L_end = "K1_kv", "K1_cs", "K1_end"
    load_ptrs(a)
    a.e("s_cmp_ge_u32 s2, 200")
    a.e(f"s_cbranch_scc1 {L_end}")
    a.e("s_cmp_ge_u32 s2, 176")
    a.e(f"s_cbranch_scc1 {L_cs}")
    maxv = 0
    lds = 0
    for path in ("q", "kv"):
        R = RegAlloc(1, 256)
        vl = R.get()
        if path == "q":
            a.e("s_cmp_ge_u32 s2, 160")
            a.e(f"s_cbranch_scc1 {L_kv}")
            wave_ids(a, vl, 1)
            a.e("s_and_b32 s3, s2, 7")
            a.e("s_lshl_b32 s3, s3, 1")
            a.e(f"s_lshr_b32 s{S_CG}, s2, 3")
            a.e(f"s_cmp_ge_u32 s{S_CG}, 10")
            a.e(f"s_cselect_b32 s{S_T0}, 10, 0")
            a.e(f"s_cselect_b32 s{S_T1}, 1, 0")
            a.e(f"s_sub_u32 s{S_CG}, s{S_CG}, s{S_T0}")
            a.e(f"s_add_u32 s{S_RB}, s3, s{S_T1}")
            a.e(f"s_lshl_b32 s{S_COL0}, s{S_CG}, 7")
            a.e("s_waitcnt lgkmcnt(0)")
            srd(a, S_WSRD, P_WQ, P_WQ + 1, D_ * D_ * 2)
        else:
            a.lab(L_kv)
            wave_ids(a, vl, 1)
            a.e("s_and_b32 s3, s2, 7")
            a.e("s_lshl_b32 s3, s3, 1")
            a.e(f"s_sub_u32 s{S_T0}, s2, 160")
            a.e(f"s_lshr_b32 s{S_T0}, s{S_T0}, 3")
            a.e(f"s_add_u32 s{S_RB}, s3, s{S_T0}")
            a.e(f"s_mov_b32 s{S_COL0}, 0")
            a.e("s_waitcnt lgkmcnt(0)")
            a.e(f"s_cmp_ge_u32 s{S_WAVE}, 2")
            a.e(f"s_cselect_b32 s{S_WSRD}, s{P_WV}, s{P_WK}")
            a.e(f"s_cselect_b32 s{S_WSRD+1}, s{P_WV+1}, s{P_WK+1}")
            a.e(f"s_and_b32 s{S_WSRD+1}, s{S_WSRD+1}, 0xffff")
            a.e(f"s_mov_b32 s{S_WSRD+2}, {D_*20*2}")
            a.e(f"s_mov_b32 s{S_WSRD+3}, 0x00020000")
        srd(a, S_XSRD, P_X, P_X + 1, S_TOK * D_ * 2)
        a.e(f"s_lshl_b32 s{S_T0}, s{S_RB}, 2")
        a.e(f"s_add_u32 s56, s{S_T0}, s{S_WM}")
        v_tok = R.get()
        v_h = R.get()
        v_xoff = R.get()
        a.e(f"v_and_b32 {v(v_tok)}, 31, {v(vl)}")
        a.e(f"s_lshl_b32 s{S_T0}, s56, 5")
        a.e(f"v_add_u32 {v(v_tok)}, s{S_T0}, {v(v_tok)}")
        a.e(f"v_lshrrev_b32 {v(v_h)}, 5, {v(vl)}")
        a.e(f"v_mul_u32_u24 {v(v_xoff)}, {D_*2}, {v(v_tok)}")
        a.e(f"v_lshl_add_u32 {v(v_xoff)}, {v(v_h)}, 4, {v(v_xoff)}")
        v_ones = R.get()
        v_s1 = R.get(); v_s2 = R.get()
        v_cs = [R.get(), R.get()]
        a.e(f"v_mov_b32 {v(v_ones)}, 0x3f803f80")
        for r_ in (v_s1, v_s2, v_cs[0], v_cs[1]):
            a.e(f"v_mov_b32 {v(r_)}, 0")

        c = Cfg()
        c.KT, c.KS, c.NB, c.U = D_, 64, 6, 5
        c.WM, c.WN, c.T = 4, 1, 2
        c.xorder, c.xstride, c.v_xoff, c.x_clamp = 'a', 32, v_xoff, True
        c.s_col0, c.v_lane = S_COL0, vl
        if path == "q":
            c.C16, c.nmat, c.pitch, c.mode = 4, 1, D_ * 2, 'plain'
            c.swap = [False, False]
        else:
            c.C16, c.nmat, c.pitch, c.mode = 2, 2, 40, 'permat'
            c.swap = [False, True]

        def hook_w(t, w):
            for j in range(4):
                a.e(f"v_dot2_f32_bf16 {v(v_cs[t])}, {v(w+j)}, {v(v_ones)}, {v(v_cs[t])}")

        def hook_x(x):
            for j in range(4):
                a.e(f"v_dot2_f32_bf16 {v(v_s1)}, {v(x+j)}, {v(v_ones)}, {v(v_s1)}")
                a.e(f"v_dot2_f32_bf16 {v(v_s2)}, {v(x+j)}, {v(x+j)}, {v(v_s2)}")

        c.hook_w, c.hook_x = hook_w, hook_x
        acc = gemm_engine(a, R, c)
        scr = c.lds_bytes
        lds = max(lds, scr + 4096)
        t0 = R.get(); t1 = R.get()
        v_mu = R.get(); v_rs = R.get()
        v_sa = R.get()
        xhalf_add(a, v_s1, t0, t1)
        xhalf_add(a, v_s2, t0, t1)
        xhalf_add(a, v_cs[0], t0, t1)
        xhalf_add(a, v_cs[1], t0, t1)
        ln_stats(a, v_s1, v_s2, v_mu, v_rs, t0)
        a.e(f"s_lshl_b32 s{S_T0}, s{S_WAVE}, 10")
        a.e(f"s_add_u32 s{S_T0}, s{S_T0}, {scr}")
        a.e(f"v_and_b32 {v(v_sa)}, 31, {v(vl)}")
        a.e(f"v_lshlrev_b32 {v(v_sa)}, 2, {v(v_sa)}")
        a.e(f"v_add_u32 {v(v_sa)}, s{S_T0}, {v(v_sa)}")
        a.e(f"ds_write_b32 {v(v_sa)}, {v(v_cs[0])} offset:0")
        a.e(f"ds_write_b32 {v(v_sa)}, {v(v_cs[1])} offset:128")
        a.e(f"ds_write_b32 {v(v_sa)}, {v(v_mu)} offset:256")
        a.e(f"ds_write_b32 {v(v_sa)}, {v(v_rs)} offset:384")
        v_ra = R.get()
        a.e(f"v_lshlrev_b32 {v(v_ra)}, 4, {v(v_h)}")
        a.e(f"v_add_u32 {v(v_ra)}, s{S_T0}, {v(v_ra)}")
        a.e("s_waitcnt lgkmcnt(0)")
        csr = R.get(16, 4)
        pk = R.get(8, 4)
        if path == "q":
            srd_off(a, S_E0, P_WS, P_WS + 1, WS_Q, S_TOK * D_ * 2)
            v_qa = R.get()
            a.e(f"v_mul_u32_u24 {v(v_qa)}, {D_*2}, {v(v_tok)}")
            a.e(f"v_lshl_add_u32 {v(v_qa)}, {v(v_h)}, 3, {v(v_qa)}")
            a.e(f"v_add_u32 {v(v_qa)}, s{S_COL0}, {v(v_qa)}")
            a.e(f"v_mul_f32 {v(v_rs)}, {f32(QSCALE)}, {v(v_rs)}")
            for t in range(2):
                for j in range(4):
                    a.e(f"ds_read_b128 {v(csr+4*j,4)}, {v(v_ra)} offset:{t*128+32*j}")
                a.e("s_waitcnt lgkmcnt(0)")
                for r in range(16):
                    a.e(f"v_fma_f32 {v(csr+r)}, {v(v_mu)}, {v(csr+r)}, {v(acc[t]+r)}")
                    a.e(f"v_mul_f32 {v(csr+r)}, {v(v_rs)}, {v(csr+r)}")
                for r in range(8):
                    a.e(f"v_cvt_pk_bf16_f32 {v(pk+r)}, {v(csr+2*r)}, {v(csr+2*r+1)}")
                for j in range(4):
                    a.e(f"buffer_store_dwordx2 {v(pk+2*j,2)}, {v(v_qa)}, {s(S_E0,4)}, 0 offen offset:{t*64+16*j}")
                a.e("s_nop 1")
            a.e("s_endpgm")
        else:
            a.e(f"s_lshl_b32 s{S_T1}, s56, 12")
            a.e(f"s_add_u32 s{S_T1}, s{S_T1}, {WS_KV}")
            srd_off(a, S_E0, P_WS, P_WS + 1, f"s{S_T1}", 4096)
            for j in range(3):
                a.e(f"ds_read_b128 {v(csr+4*j,4)}, {v(v_ra)} offset:{32*j}")
            a.e("s_waitcnt lgkmcnt(0)")
            for r in range(12):
                a.e(f"v_fma_f32 {v(csr+r)}, {v(v_mu)}, {v(csr+r)}, {v(acc[0]+r)}")
                a.e(f"v_mul_f32 {v(csr+r)}, {v(v_rs)}, {v(csr+r)}")
            for r in range(6):
                a.e(f"v_cvt_pk_bf16_f32 {v(pk+r)}, {v(csr+2*r)}, {v(csr+2*r+1)}")
            a.e(f"v_cmp_eq_u32 vcc, 1, {v(v_h)}")
            a.e(f"v_mov_b32 {v(t0)}, 0x3f803f80")
            a.e(f"v_mov_b32 {v(t1)}, 0x00003f80")
            a.e(f"v_cndmask_b32 {v(pk+4)}, {v(pk+4)}, {v(t0)}, vcc")
            a.e(f"v_cndmask_b32 {v(pk+5)}, {v(pk+5)}, {v(t1)}, vcc")
            v_ka = R.get()
            a.e(f"v_and_b32 {v(v_ka)}, 31, {v(vl)}")
            a.e(f"v_lshlrev_b32 {v(v_ka)}, 4, {v(v_ka)}")
            a.e(f"v_lshl_add_u32 {v(v_ka)}, {v(v_h)}, 3, {v(v_ka)}")
            a.e(f"buffer_store_dwordx2 {v(pk,2)}, {v(v_ka)}, {s(S_E0,4)}, 0 offen offset:0")
            a.e(f"buffer_store_dwordx2 {v(pk+2,2)}, {v(v_ka)}, {s(S_E0,4)}, 0 offen offset:512")
            a.e(f"v_lshlrev_b32 {v(v_ka)}, 3, {v(vl)}")
            a.e(f"buffer_store_dwordx2 {v(pk+4,2)}, {v(v_ka)}, {s(S_E0,4)}, 0 offen offset:1024")
            rsr = R.get(16, 4)
            for j in range(4):
                a.e(f"ds_read_b128 {v(csr+4*j,4)}, {v(v_ra)} offset:{256+32*j}")
                a.e(f"ds_read_b128 {v(rsr+4*j,4)}, {v(v_ra)} offset:{384+32*j}")
            a.e("s_waitcnt lgkmcnt(0)")
            a.e(f"v_and_b32 {v(t0)}, 31, {v(vl)}")
            a.e(f"v_cmp_gt_u32 s[58:59], 20, {v(t0)}")
            a.e(f"v_cmp_eq_u32 vcc, 20, {v(t0)}")
            a.e(f"v_mov_b32 {v(t1)}, 0")
            a.e("s_nop 1")
            a.e(f"v_cndmask_b32 {v(t1)}, {v(t1)}, 1.0, vcc")
            for r in range(16):
                a.e(f"v_fma_f32 {v(csr+r)}, {v(csr+r)}, {v(v_cs[1])}, {v(acc[1]+r)}")
                a.e(f"v_mul_f32 {v(csr+r)}, {v(rsr+r)}, {v(csr+r)}")
                a.e(f"v_cndmask_b32 {v(csr+r)}, {v(t1)}, {v(csr+r)}, s[58:59]")
            a.e("s_nop 1")
            for r in range(8):
                a.e(f"v_cvt_pk_bf16_f32 {v(pk+r)}, {v(csr+2*r)}, {v(csr+2*r+1)}")
            a.e(f"v_lshlrev_b32 {v(v_ka)}, 4, {v(vl)}")
            a.e(f"buffer_store_dwordx4 {v(pk,4)}, {v(v_ka)}, {s(S_E0,4)}, 0 offen offset:2048")
            a.e(f"buffer_store_dwordx4 {v(pk+4,4)}, {v(v_ka)}, {s(S_E0,4)}, 0 offen offset:3072")
            a.e("s_endpgm")
        maxv = max(maxv, R.hw)

    a.lab(L_cs)
    R = RegAlloc(1, 256)
    vl = R.get()
    wave_ids(a, vl, 1)
    a.e("s_sub_u32 s3, s2, 176")
    a.e("s_cmp_ge_u32 s3, 12")
    a.e(f"s_cselect_b32 s{S_T0}, 12, 0")
    a.e(f"s_cselect_b32 s{S_T2}, {F_*4}, 0")
    a.e(f"s_sub_u32 s{S_CG}, s3, s{S_T0}")
    a.e("s_waitcnt lgkmcnt(0)")
    a.e("s_cmp_ge_u32 s3, 12")
    a.e(f"s_cselect_b32 s{S_WSRD}, s{P_WU}, s{P_WG}")
    a.e(f"s_cselect_b32 s{S_WSRD+1}, s{P_WU+1}, s{P_WG+1}")
    a.e(f"s_and_b32 s{S_WSRD+1}, s{S_WSRD+1}, 0xffff")
    a.e(f"s_mov_b32 s{S_WSRD+2}, {D_*F_*2}")
    a.e(f"s_mov_b32 s{S_WSRD+3}, 0x00020000")
    v_off = R.get(); t0 = R.get(); t1 = R.get()
    c10 = R.get(); c01 = R.get()
    accs = R.get(8, 4)
    a.e(f"v_lshrrev_b32 {v(t0)}, 4, {v(vl)}")
    a.e(f"s_lshl_b32 s{S_T0}, s{S_WAVE}, 2")
    a.e(f"v_add_u32 {v(t0)}, s{S_T0}, {v(t0)}")
    a.e(f"v_mul_u32_u24 {v(v_off)}, {F_*2}, {v(t0)}")
    a.e(f"v_and_b32 {v(t1)}, 15, {v(vl)}")
    a.e(f"v_lshl_add_u32 {v(v_off)}, {v(t1)}, 4, {v(v_off)}")
    a.e(f"s_lshl_b32 s{S_T0}, s{S_CG}, 8")
    a.e(f"v_add_u32 {v(v_off)}, s{S_T0}, {v(v_off)}")
    a.e(f"v_mov_b32 {v(c10)}, 0x00003f80")
    a.e(f"v_mov_b32 {v(c01)}, 0x3f800000")
    for e_ in range(8):
        a.e(f"v_mov_b32 {v(accs+e_)}, 0")
    buf = R.get(160, 4)
    a.e(f"s_mov_b32 s{S_T1}, 0")
    for it in range(40):
        a.e(f"buffer_load_dwordx4 {v(buf+4*it,4)}, {v(v_off)}, {s(S_WSRD,4)}, s{S_T1} offen")
        a.e(f"s_add_u32 s{S_T1}, s{S_T1}, {16*F_*2}")
    for it in range(40):
        a.e(f"s_waitcnt vmcnt({39-it})")
        for j in range(4):
            a.e(f"v_dot2_f32_bf16 {v(accs+2*j)}, {v(buf+4*it+j)}, {v(c10)}, {v(accs+2*j)}")
            a.e(f"v_dot2_f32_bf16 {v(accs+2*j+1)}, {v(buf+4*it+j)}, {v(c01)}, {v(accs+2*j+1)}")
    a.e("s_nop 3")
    a.e(f"v_lshlrev_b32 {v(t0)}, 9, {v(t0)}")
    a.e(f"v_lshl_add_u32 {v(t0)}, {v(t1)}, 5, {v(t0)}")
    a.e(f"ds_write_b128 {v(t0)}, {v(accs,4)} offset:0")
    a.e(f"ds_write_b128 {v(t0)}, {v(accs+4,4)} offset:16")
    a.e("s_waitcnt lgkmcnt(0)")
    a.e("s_barrier")
    a.e(f"s_cmp_ge_u32 s{S_WAVE}, 2")
    a.e(f"s_cbranch_scc1 {L_end}")
    a.e(f"v_lshlrev_b32 {v(t0)}, 2, v0")
    for g in range(16):
        a.e(f"ds_read_b32 {v(buf+g)}, {v(t0)} offset:{512*g}")
    a.e("s_waitcnt lgkmcnt(0)")
    for g in range(1, 16):
        a.e(f"v_add_f32 {v(buf)}, {v(buf)}, {v(buf+g)}")
    a.e(f"s_lshl_b32 s{S_T0}, s{S_CG}, 9")
    a.e(f"s_add_u32 s{S_T0}, s{S_T0}, s{S_T2}")
    a.e(f"s_add_u32 s{S_T0}, s{S_T0}, {WS_CS}")
    srd_off(a, S_E0, P_WS, P_WS + 1, f"s{S_T0}", 512)
    a.e(f"buffer_store_dword {v(buf)}, {v(t0)}, {s(S_E0,4)}, 0 offen")
    a.lab(L_end)
    a.e("s_endpgm")
    maxv = max(maxv, R.hw)
    return name, 200, 256, lds, maxv


def k2(a):
    name = "k2_attn_kernel"
    header(a, name)
    L_end = "K2_end"
    CH = 8
    CHB = CH * 4096
    NBUF = 3
    FLAG = NBUF * CHB
    load_ptrs(a)
    a.e("s_cmp_ge_u32 s2, 256")
    a.e(f"s_cbranch_scc1 {L_end}")
    R = RegAlloc(1, 256)
    vl = R.get()
    a.e(f"v_lshrrev_b32 {v(vl)}, 6, v0")
    a.e("s_nop 0")
    a.e(f"v_readfirstlane_b32 s{S_WAVE}, {v(vl)}")
    a.e(f"v_and_b32 {v(vl)}, 63, v0")
    a.e("s_lshl_b32 s3, s2, 3")
    a.e(f"s_add_u32 s3, s3, s{S_WAVE}")
    S_HD, S_QT = 43, 44
    S_KVO, S_DST, S_CNT, S_MODE, S_RB0 = 45, 46, 47, 48, 49
    S_KV = 16
    S_QS = 20
    S_OS = 24
    a.e(f"s_and_b32 s{S_HD}, s3, 31")
    a.e(f"s_lshr_b32 s{S_QT}, s3, 5")
    a.e("s_waitcnt lgkmcnt(0)")
    srd_off(a, S_KV, P_WS, P_WS + 1, WS_KV, 64 * 4096)
    srd_off(a, S_QS, P_WS, P_WS + 1, WS_Q, S_TOK * D_ * 2)
    srd_off(a, S_OS, P_WS, P_WS + 1, WS_O, S_TOK * D_ * 2)
    v_h = R.get(); v_m = R.get()
    v_l16 = R.get()
    v_l8 = R.get()
    v_dsrc = R.get()
    t0 = R.get(); t1 = R.get(); t2 = R.get(); t3 = R.get()
    a.e(f"v_lshrrev_b32 {v(v_h)}, 5, {v(vl)}")
    a.e(f"v_and_b32 {v(v_m)}, 31, {v(vl)}")
    a.e(f"v_lshlrev_b32 {v(v_l16)}, 4, {v(vl)}")
    a.e(f"v_lshlrev_b32 {v(v_l8)}, 3, {v(vl)}")
    a.e(f"s_lshl_b32 s{S_T0}, s{S_WAVE}, 12")
    a.e(f"v_add_u32 {v(v_dsrc)}, s{S_T0}, {v(v_l16)}")
    Q0 = R.get(4, 4); Q1 = R.get(2, 2); Q1raw = R.get(2, 2)
    SS = [R.get(16, 4), R.get(16, 4)]
    PP = R.get(8, 4)
    O = R.get(16, 4)
    K0 = [R.get(4, 4), R.get(4, 4)]
    K1 = [R.get(2, 2), R.get(2, 2)]
    V0 = [R.get(4, 4), R.get(4, 4)]
    V1 = [R.get(4, 4), R.get(4, 4)]
    rd16 = [R.get(), R.get()]
    rd8 = [R.get(), R.get()]
    a.e(f"s_lshl_b32 s{S_T0}, s{S_QT}, 5")
    a.e(f"v_add_u32 {v(t0)}, s{S_T0}, {v(v_m)}")
    a.e(f"v_mul_u32_u24 {v(t0)}, {D_*2}, {v(t0)}")
    a.e(f"s_mul_i32 s{S_T0}, s{S_HD}, 40")
    a.e(f"v_add_u32 {v(t0)}, s{S_T0}, {v(t0)}")
    a.e(f"v_lshl_add_u32 {v(t1)}, {v(v_h)}, 4, {v(t0)}")
    a.e(f"buffer_load_dwordx4 {v(Q0,4)}, {v(t1)}, {s(S_QS,4)}, 0 offen")
    a.e(f"buffer_load_dwordx2 {v(Q1raw,2)}, {v(t0)}, {s(S_QS,4)}, 0 offen offset:32")
    a.e(f"s_mov_b32 s{S_MODE}, 0")
    a.e(f"v_mov_b32 {v(t2)}, {FLAG}")
    a.e(f"v_mov_b32 {v(t3)}, 0")
    a.e(f"ds_write_b32 {v(t2)}, {v(t3)}")

    def dma_chunk():
        for d in range(4):
            a.e(f"s_add_u32 m0, s{S_DST}, {1024*d}")
            a.e(f"s_add_u32 s{S_T0}, s{S_KVO}, {1024*d}")
            a.e(f"buffer_load_dwordx4 {v(v_dsrc)}, {s(S_KV,4)}, s{S_T0} offen lds")
        a.e(f"s_add_u32 s{S_KVO}, s{S_KVO}, {CHB}")
        a.e(f"s_add_u32 s{S_DST}, s{S_DST}, {CHB}")
        a.e(f"s_lshl_b32 s{S_T0}, s{S_WAVE}, 12")
        a.e(f"s_add_u32 s{S_T1}, s{S_T0}, {NBUF*CHB}")
        a.e(f"s_cmp_ge_u32 s{S_DST}, s{S_T1}")
        a.e(f"s_cselect_b32 s{S_DST}, s{S_T0}, s{S_DST}")

    def rdK(p, tile, b):
        a.e(f"ds_read_b128 {v(K0[p],4)}, {v(rd16[b])} offset:{tile*4096}")
        a.e(f"ds_read_b64 {v(K1[p],2)}, {v(rd8[b])} offset:{tile*4096+1024}")

    def rdV(p, tile, b):
        a.e(f"ds_read_b128 {v(V0[p],4)}, {v(rd16[b])} offset:{tile*4096+2048}")
        a.e(f"ds_read_b128 {v(V1[p],4)}, {v(rd16[b])} offset:{tile*4096+3072}")

    def set_q1(mreg):
        a.e(f"v_and_b32 {v(t0)}, 0xffff0000, {v(mreg)}")
        a.e(f"v_sub_f32 {v(t1)}, {v(mreg)}, {v(t0)}")
        a.e(f"v_and_b32 {v(t2)}, 0xffff0000, {v(t1)}")
        a.e(f"v_sub_f32 {v(t1)}, {v(t1)}, {v(t2)}")
        a.e(f"v_xor_b32 {v(t0)}, 0x80000000, {v(t0)}")
        a.e(f"v_xor_b32 {v(t2)}, 0x80000000, {v(t2)}")
        a.e(f"v_xor_b32 {v(t1)}, 0x80000000, {v(t1)}")
        a.e(f"v_lshrrev_b32 {v(t0)}, 16, {v(t0)}")
        a.e(f"v_or_b32 {v(t0)}, {v(t0)}, {v(t2)}")
        a.e(f"v_lshrrev_b32 {v(t1)}, 16, {v(t1)}")
        a.e(f"v_cmp_eq_u32 vcc, 1, {v(v_h)}")
        a.e("s_nop 1")
        a.e(f"v_cndmask_b32 {v(Q1)}, {v(Q1raw)}, {v(t0)}, vcc")
        a.e(f"v_cndmask_b32 {v(Q1+1)}, {v(Q1raw+1)}, {v(t1)}, vcc")
        a.e("s_nop 1")

    def max16(src, dst):
        a.e(f"v_max3_f32 {v(dst)}, {v(src)}, {v(src+1)}, {v(src+2)}")
        for i in range(3, 15, 2):
            a.e(f"v_max3_f32 {v(dst)}, {v(dst)}, {v(src+i)}, {v(src+i+1)}")
        a.e(f"v_max_f32 {v(dst)}, {v(dst)}, {v(src+15)}")

    def xhalf_max(x):
        a.e(f"v_mov_b32 {v(t0)}, {v(x)}")
        a.e(f"v_mov_b32 {v(t1)}, {v(x)}")
        a.e("s_nop 1")
        a.e(f"v_permlane32_swap_b32 {v(t0)}, {v(t1)}")
        a.e("s_nop 1")
        a.e(f"v_max_f32 {v(x)}, {v(t0)}, {v(t1)}")

    v_mx = R.get()
    L_main = "K2_main"
    L_skipm = "K2_skipm"
    a.lab(L_main)
    a.e(f"s_mov_b32 s{S_KVO}, 0")
    a.e(f"s_lshl_b32 s{S_DST}, s{S_WAVE}, 12")
    dma_chunk()
    dma_chunk()
    a.e(f"v_mov_b32 {v(rd16[0])}, {v(v_l16)}")
    a.e(f"v_mov_b32 {v(rd8[0])}, {v(v_l8)}")
    a.e(f"v_add_u32 {v(rd16[1])}, {CHB}, {v(v_l16)}")
    a.e(f"v_add_u32 {v(rd8[1])}, {CHB}, {v(v_l8)}")
    a.e(f"s_mov_b32 s{S_RB0}, {CHB}")
    for r in range(16):
        a.e(f"v_mov_b32 {v(O+r)}, 0")
    a.e("s_waitcnt vmcnt(4) lgkmcnt(0)")
    a.e("s_barrier")
    rdK(0, 0, 0)
    rdK(1, 1, 0)
    rdV(0, 0, 0)
    a.e(f"s_cmp_lg_u32 s{S_MODE}, 0")
    a.e(f"s_cbranch_scc1 {L_skipm}")
    a.e(f"v_cmp_eq_u32 vcc, 1, {v(v_h)}")
    a.e("s_nop 1")
    a.e(f"v_cndmask_b32 {v(Q1)}, {v(Q1raw)}, 0, vcc")
    a.e(f"v_cndmask_b32 {v(Q1+1)}, {v(Q1raw+1)}, 0, vcc")
    a.e("s_waitcnt lgkmcnt(0)")
    a.e(f"v_mfma_f32_32x32x16_bf16 {v(SS[0],16)}, {v(K0[0],4)}, {v(Q0,4)}, 0")
    a.e(f"v_mfma_f32_32x32x8_bf16 {v(SS[0],16)}, {v(K1[0],2)}, {v(Q1,2)}, {v(SS[0],16)}")
    a.nop(16)
    max16(SS[0], v_mx)
    xhalf_max(v_mx)
    set_q1(v_mx)
    a.lab(L_skipm)
    a.e("s_waitcnt lgkmcnt(0)")
    a.e(f"v_mfma_f32_32x32x16_bf16 {v(SS[0],16)}, {v(K0[0],4)}, {v(Q0,4)}, 0")
    a.e(f"v_mfma_f32_32x32x8_bf16 {v(SS[0],16)}, {v(K1[0],2)}, {v(Q1,2)}, {v(SS[0],16)}")
    a.nop(16)
    a.e(f"s_mov_b32 s{S_CNT}, 8")
    L_loop = "K2_loop"
    a.lab(L_loop)
    for j in range(CH):
        p = j % 2
        Sc, Sn = SS[p], SS[1 - p]
        if j == CH - 2:
            a.e("s_waitcnt vmcnt(0)")
            a.e("s_barrier")
            dma_chunk()
        a.e("s_waitcnt lgkmcnt(2)")
        a.e(f"v_mfma_f32_32x32x16_bf16 {v(Sn,16)}, {v(K0[1-p],4)}, {v(Q0,4)}, 0")
        for i in range(0, 4):
            a.e(f"v_exp_f32 {v(Sc+i)}, {v(Sc+i)}")
        a.e(f"v_mfma_f32_32x32x8_bf16 {v(Sn,16)}, {v(K1[1-p],2)}, {v(Q1,2)}, {v(Sn,16)}")
        if j + 2 < CH:
            rdK(p, j + 2, 0)
        else:
            rdK(p, j + 2 - CH, 1)
        for i in range(4, 8):
            a.e(f"v_exp_f32 {v(Sc+i)}, {v(Sc+i)}")
        for i in range(4):
            a.e(f"v_cvt_pk_bf16_f32 {v(PP+i)}, {v(Sc+2*i)}, {v(Sc+2*i+1)}")
        for i in range(8, 10):
            a.e(f"v_exp_f32 {v(Sc+i)}, {v(Sc+i)}")
        a.e("s_waitcnt lgkmcnt(2)")
        a.e(f"v_mfma_f32_32x32x16_bf16 {v(O,16)}, {v(V0[p],4)}, {v(PP,4)}, {v(O,16)}")
        for i in range(10, 16):
            a.e(f"v_exp_f32 {v(Sc+i)}, {v(Sc+i)}")
        if j + 1 < CH:
            rdV(1 - p, j + 1, 0)
        else:
            rdV(1 - p, j + 1 - CH, 1)
        for i in range(4, 8):
            a.e(f"v_cvt_pk_bf16_f32 {v(PP+i)}, {v(Sc+2*i)}, {v(Sc+2*i+1)}")
        if j == CH - 1:
            a.e(f"v_mov_b32 {v(rd16[0])}, {v(rd16[1])}")
            a.e(f"v_mov_b32 {v(rd8[0])}, {v(rd8[1])}")
            a.e(f"s_add_u32 s{S_RB0}, s{S_RB0}, {CHB}")
            a.e(f"s_cmp_ge_u32 s{S_RB0}, {NBUF*CHB}")
            a.e(f"s_cselect_b32 s{S_RB0}, 0, s{S_RB0}")
            a.e(f"v_add_u32 {v(rd16[1])}, s{S_RB0}, {v(v_l16)}")
            a.e(f"v_add_u32 {v(rd8[1])}, s{S_RB0}, {v(v_l8)}")
        else:
            a.e("s_nop 1")
        a.e(f"v_mfma_f32_32x32x16_bf16 {v(O,16)}, {v(V1[p],4)}, {v(PP+4,4)}, {v(O,16)}")
    a.e(f"s_sub_u32 s{S_CNT}, s{S_CNT}, 1")
    a.e(f"s_cmp_lg_u32 s{S_CNT}, 0")
    a.e(f"s_cbranch_scc1 {L_loop}")
    a.e("s_waitcnt vmcnt(0) lgkmcnt(0)")
    a.nop(16)
    v_l = R.get()
    a.e(f"v_mov_b32 {v(t0)}, {v(O+8)}")
    a.e(f"v_mov_b32 {v(v_l)}, {v(O+8)}")
    a.e("s_nop 1")
    a.e(f"v_permlane32_swap_b32 {v(t0)}, {v(v_l)}")
    a.e("s_nop 1")
    L_ok = "K2_ok"
    a.e(f"s_cmp_lg_u32 s{S_MODE}, 0")
    a.e(f"s_cbranch_scc1 {L_ok}")
    a.e(f"v_max3_f32 {v(t0)}, abs({v(O)}), abs({v(O+1)}), abs({v(O+2)})")
    for i in range(3, 11, 2):
        a.e(f"v_max3_f32 {v(t0)}, {v(t0)}, abs({v(O+i)}), abs({v(O+i+1)})")
    a.e(f"v_max_f32 {v(t0)}, {v(t0)}, abs({v(O+11)})")
    a.e(f"v_mov_b32 {v(t1)}, {f32(2.0**64)}")
    a.e(f"v_mov_b32 {v(t2)}, {f32(2.0**120)}")
    a.e(f"v_cmp_nlt_f32 s[58:59], {v(v_l)}, {v(t1)}")
    a.e(f"v_cmp_nlt_f32 vcc, {v(t0)}, {v(t2)}")
    a.e(f"v_add_f32 {v(t3)}, {v(O)}, {v(O+1)}")
    for i in range(2, 12):
        a.e(f"v_add_f32 {v(t3)}, {v(t3)}, {v(O+i)}")
    a.e("s_or_b64 s[58:59], s[58:59], vcc")
    a.e(f"v_cmp_u_f32 vcc, {v(t3)}, {v(t3)}")
    a.e("s_nop 1")
    a.e("s_or_b64 s[58:59], s[58:59], vcc")
    a.e("s_cmp_eq_u64 s[58:59], 0")
    L_noflag = "K2_noflag"
    a.e(f"s_cbranch_scc1 {L_noflag}")
    a.e(f"v_mov_b32 {v(t2)}, {FLAG}")
    a.e(f"v_mov_b32 {v(t3)}, 1")
    a.e(f"ds_write_b32 {v(t2)}, {v(t3)}")
    a.lab(L_noflag)
    a.e("s_waitcnt lgkmcnt(0)")
    a.e("s_barrier")
    a.e(f"v_mov_b32 {v(t2)}, {FLAG}")
    a.e(f"ds_read_b32 {v(t3)}, {v(t2)}")
    a.e("s_waitcnt lgkmcnt(0)")
    a.e(f"v_readfirstlane_b32 s{S_T0}, {v(t3)}")
    a.e(f"s_cmp_eq_u32 s{S_T0}, 0")
    a.e(f"s_cbranch_scc1 {L_ok}")
    a.e(f"s_mov_b32 s{S_MODE}, 1")
    a.e(f"v_cmp_eq_u32 vcc, 1, {v(v_h)}")
    a.e("s_nop 1")
    a.e(f"v_cndmask_b32 {v(Q1)}, {v(Q1raw)}, 0, vcc")
    a.e(f"v_cndmask_b32 {v(Q1+1)}, {v(Q1raw+1)}, 0, vcc")
    a.e(f"v_mov_b32 {v(v_mx)}, 0xff800000")
    a.e(f"s_mov_b32 s{S_KVO}, 0")
    L_mx = "K2_mx"
    a.lab(L_mx)
    a.e(f"buffer_load_dwordx4 {v(K0[0],4)}, {v(v_l16)}, {s(S_KV,4)}, s{S_KVO} offen")
    a.e(f"buffer_load_dwordx2 {v(K1[0],2)}, {v(v_l8)}, {s(S_KV,4)}, s{S_KVO} offen offset:1024")
    a.e("s_waitcnt vmcnt(0)")
    a.e(f"v_mfma_f32_32x32x16_bf16 {v(SS[0],16)}, {v(K0[0],4)}, {v(Q0,4)}, 0")
    a.e(f"v_mfma_f32_32x32x8_bf16 {v(SS[0],16)}, {v(K1[0],2)}, {v(Q1,2)}, {v(SS[0],16)}")
    a.nop(16)
    max16(SS[0], t2)
    a.e(f"v_max_f32 {v(v_mx)}, {v(v_mx)}, {v(t2)}")
    a.e(f"s_add_u32 s{S_KVO}, s{S_KVO}, 4096")
    a.e(f"s_cmp_lt_u32 s{S_KVO}, {64*4096}")
    a.e(f"s_cbranch_scc1 {L_mx}")
    xhalf_max(v_mx)
    set_q1(v_mx)
    a.e("s_barrier")
    a.e(f"s_branch {L_main}")
    a.lab(L_ok)
    a.e(f"v_rcp_f32 {v(v_l)}, {v(v_l)}")
    a.e("s_nop 0")
    for r in range(12):
        a.e(f"v_mul_f32 {v(O+r)}, {v(O+r)}, {v(v_l)}")
    for r in range(6):
        a.e(f"v_cvt_pk_bf16_f32 {v(PP+r)}, {v(O+2*r)}, {v(O+2*r+1)}")
    a.e(f"s_mul_i32 s{S_T0}, s{S_HD}, 5")
    a.e(f"s_mul_i32 s{S_T1}, s{S_QT}, 40960")
    for j in range(3):
        a.e(f"v_add_u32 {v(t0)}, s{S_T0}, {v(v_h)}")
        if j:
            a.e(f"v_add_u32 {v(t0)}, {2*j}, {v(t0)}")
        a.e(f"v_lshrrev_b32 {v(t1)}, 2, {v(t0)}")
        a.e(f"v_lshlrev_b32 {v(t1)}, 10, {v(t1)}")
        a.e(f"v_bfe_u32 {v(t2)}, {v(t0)}, 1, 1")
        a.e(f"v_lshl_add_u32 {v(t1)}, {v(t2)}, 9, {v(t1)}")
        a.e(f"v_and_b32 {v(t2)}, 1, {v(t0)}")
        a.e(f"v_lshl_add_u32 {v(t1)}, {v(t2)}, 3, {v(t1)}")
        a.e(f"v_lshl_add_u32 {v(t1)}, {v(v_m)}, 4, {v(t1)}")
        if j == 2:
            a.e(f"v_cmp_eq_u32 vcc, 0, {v(v_h)}")
            a.e("s_and_saveexec_b64 s[58:59], vcc")
        a.e(f"buffer_store_dwordx2 {v(PP+2*j,2)}, {v(t1)}, {s(S_OS,4)}, s{S_T1} offen")
    a.lab(L_end)
    a.e("s_endpgm")
    return name, 256, 512, NBUF * CHB + 64, R.hw


def map_16x10(a):
    a.e("s_and_b32 s3, s2, 7")
    a.e("s_lshl_b32 s3, s3, 1")
    a.e(f"s_lshr_b32 s{S_CG}, s2, 3")
    a.e(f"s_cmp_ge_u32 s{S_CG}, 10")
    a.e(f"s_cselect_b32 s{S_T0}, 10, 0")
    a.e(f"s_cselect_b32 s{S_T1}, 1, 0")
    a.e(f"s_sub_u32 s{S_CG}, s{S_CG}, s{S_T0}")
    a.e(f"s_add_u32 s{S_RB}, s3, s{S_T1}")
    a.e(f"s_lshl_b32 s{S_COL0}, s{S_CG}, 7")


def k35(a, which):
    name = "k3_wo_kernel" if which == 3 else "k5_down_kernel"
    L_end = f"K{which}_end"
    header(a, name)
    load_ptrs(a)
    a.e("s_cmp_ge_u32 s2, 160")
    a.e(f"s_cbranch_scc1 {L_end}")
    R = RegAlloc(1, 256)
    vl = R.get()
    wave_ids(a, vl, 1)
    map_16x10(a)
    a.e(f"s_lshl_b32 s{S_T0}, s{S_RB}, 2")
    a.e(f"s_add_u32 s56, s{S_T0}, s{S_WM}")
    KT = D_ if which == 3 else F_
    a.e("s_waitcnt lgkmcnt(0)")
    pw = P_WO if which == 3 else P_WD
    srd(a, S_WSRD, pw, pw + 1, KT * D_ * 2)
    a.e(f"s_mul_i32 s{S_T0}, s56, {KT*64}")
    a.e(f"s_add_u32 s{S_T0}, s{S_T0}, {WS_O if which == 3 else WS_F}")
    srd_off(a, S_XSRD, P_WS, P_WS + 1, f"s{S_T0}", KT * 64)
    v_tok = R.get(); v_h = R.get(); v_xoff = R.get()
    a.e(f"v_and_b32 {v(v_tok)}, 31, {v(vl)}")
    a.e(f"s_lshl_b32 s{S_T0}, s56, 5")
    a.e(f"v_add_u32 {v(v_tok)}, s{S_T0}, {v(v_tok)}")
    a.e(f"v_lshrrev_b32 {v(v_h)}, 5, {v(vl)}")
    a.e(f"v_lshlrev_b32 {v(v_xoff)}, 4, {v(vl)}")
    c = Cfg()
    c.KT = KT
    if which == 3:
        c.KS, c.NB, c.U = 64, 6, 5
    else:
        c.KS, c.NB, c.U = 64, 6, 4
    c.WM, c.WN, c.T = 4, 1, 2
    c.xorder = 'a' if which == 3 else 'b'
    c.xstride, c.v_xoff, c.x_clamp = 1024, v_xoff, False
    c.s_col0, c.v_lane = S_COL0, vl
    c.C16, c.nmat, c.pitch, c.mode = 4, 1, D_ * 2, 'plain'
    c.swap = [False, False]
    c.hook_w = c.hook_x = None
    res = R.get(16, 4)
    v_ra = R.get()
    a.e(f"v_mul_u32_u24 {v(v_ra)}, {D_*2}, {v(v_tok)}")
    a.e(f"v_lshl_add_u32 {v(v_ra)}, {v(v_h)}, 3, {v(v_ra)}")
    a.e(f"v_add_u32 {v(v_ra)}, s{S_COL0}, {v(v_ra)}")
    a.e(f"s_mul_i32 s{S_T0}, s56, 40960")
    a.e(f"s_lshl_b32 s{S_T1}, s{S_CG}, 12")
    a.e(f"s_add_u32 s{S_T0}, s{S_T0}, s{S_T1}")
    a.e(f"s_add_u32 s{S_T0}, s{S_T0}, {WS_H}")
    srd_off(a, S_E1, P_WS, P_WS + 1, f"s{S_T0}", 4096)
    if which == 3:
        srd(a, S_E0, P_X, P_X + 1, S_TOK * D_ * 2)
        for t in range(2):
            for j in range(4):
                a.e(f"buffer_load_dwordx2 {v(res+8*t+2*j,2)}, {v(v_ra)}, {s(S_E0,4)}, 0 offen offset:{t*64+16*j}")
    else:
        srd(a, S_E0, P_OUT, P_OUT + 1, S_TOK * D_ * 2)
        for q in range(4):
            a.e(f"buffer_load_dwordx4 {v(res+4*q,4)}, {v(v_xoff)}, {s(S_E1,4)}, 0 offen offset:{1024*q}")
    acc = gemm_engine(a, R, c)
    tmp = R.get(16, 4)
    pk = R.get(16, 4)
    for t in range(2):
        for r in range(8):
            a.e(f"v_lshlrev_b32 {v(tmp+2*r)}, 16, {v(res+8*t+r)}")
            a.e(f"v_and_b32 {v(tmp+2*r+1)}, 0xffff0000, {v(res+8*t+r)}")
        for r in range(16):
            a.e(f"v_add_f32 {v(tmp+r)}, {v(tmp+r)}, {v(acc[t]+r)}")
        for r in range(8):
            a.e(f"v_cvt_pk_bf16_f32 {v(pk+8*t+r)}, {v(tmp+2*r)}, {v(tmp+2*r+1)}")
    if which == 3:
        for q in range(4):
            a.e(f"buffer_store_dwordx4 {v(pk+4*q,4)}, {v(v_xoff)}, {s(S_E1,4)}, 0 offen offset:{1024*q}")
        v_ones = R.get(); st = R.get(2, 2); t0 = R.get(); t1 = R.get()
        a.e(f"v_mov_b32 {v(v_ones)}, 0x3f803f80")
        a.e(f"v_mov_b32 {v(st)}, 0")
        a.e(f"v_mov_b32 {v(st+1)}, 0")
        for r in range(16):
            a.e(f"v_dot2_f32_bf16 {v(st)}, {v(pk+r)}, {v(v_ones)}, {v(st)}")
            a.e(f"v_dot2_f32_bf16 {v(st+1)}, {v(pk+r)}, {v(pk+r)}, {v(st+1)}")
        a.e("s_nop 3")
        xhalf_add(a, st, t0, t1)
        xhalf_add(a, st + 1, t0, t1)
        srd_off(a, S_E2, P_WS, P_WS + 1, WS_ST, S_TOK * 80)
        a.e(f"v_mul_u32_u24 {v(t0)}, 80, {v(v_tok)}")
        a.e(f"s_lshl_b32 s{S_T0}, s{S_CG}, 3")
        a.e(f"v_cmp_eq_u32 vcc, 0, {v(v_h)}")
        a.e("s_and_saveexec_b64 s[58:59], vcc")
        a.e(f"buffer_store_dwordx2 {v(st,2)}, {v(t0)}, {s(S_E2,4)}, s{S_T0} offen")
    else:
        for t in range(2):
            for j in range(4):
                a.e(f"buffer_store_dwordx2 {v(pk+8*t+2*j,2)}, {v(v_ra)}, {s(S_E0,4)}, 0 offen offset:{t*64+16*j}")
    a.lab(L_end)
    a.e("s_endpgm")
    return name, 160, 256, c.lds_bytes, R.hw


def k4(a):
    name = "k4_ffn_kernel"
    L_end = "K4_end"
    header(a, name)
    load_ptrs(a)
    a.e("s_cmp_ge_u32 s2, 256")
    a.e(f"s_cbranch_scc1 {L_end}")
    R = RegAlloc(1, 256)
    vl = R.get()
    wave_ids(a, vl, 2)
    a.e("s_and_b32 s3, s2, 7")
    a.e(f"s_lshr_b32 s{S_T0}, s2, 3")
    a.e(f"s_lshr_b32 s{S_T1}, s3, 2")
    a.e(f"s_lshl_b32 s{S_T1}, s{S_T1}, 3")
    a.e(f"s_lshr_b32 s{S_RB}, s{S_T0}, 2")
    a.e(f"s_add_u32 s{S_RB}, s{S_RB}, s{S_T1}")
    a.e(f"s_and_b32 s{S_T1}, s3, 3")
    a.e(f"s_lshl_b32 s{S_T1}, s{S_T1}, 2")
    a.e(f"s_and_b32 s{S_CG}, s{S_T0}, 3")
    a.e(f"s_add_u32 s{S_CG}, s{S_CG}, s{S_T1}")
    a.e(f"s_mul_i32 s{S_COL0}, s{S_CG}, 192")
    a.e(f"s_lshl_b32 s{S_T0}, s{S_RB}, 2")
    a.e(f"s_add_u32 s56, s{S_T0}, s{S_WM}")
    a.e("s_waitcnt lgkmcnt(0)")
    a.e(f"s_cmp_ge_u32 s{S_WAVE}, 4")
    a.e(f"s_cselect_b32 s{S_WSRD}, s{P_WU}, s{P_WG}")
    a.e(f"s_cselect_b32 s{S_WSRD+1}, s{P_WU+1}, s{P_WG+1}")
    a.e(f"s_and_b32 s{S_WSRD+1}, s{S_WSRD+1}, 0xffff")
    a.e(f"s_mov_b32 s{S_WSRD+2}, {D_*F_*2}")
    a.e(f"s_mov_b32 s{S_WSRD+3}, 0x00020000")
    a.e(f"s_mul_i32 s{S_T0}, s56, 40960")
    a.e(f"s_add_u32 s{S_T0}, s{S_T0}, {WS_H}")
    srd_off(a, S_XSRD, P_WS, P_WS + 1, f"s{S_T0}", 40960)
    v_tok = R.get(); v_h = R.get(); v_xoff = R.get()
    a.e(f"v_and_b32 {v(v_tok)}, 31, {v(vl)}")
    a.e(f"s_lshl_b32 s{S_T0}, s56, 5")
    a.e(f"v_add_u32 {v(v_tok)}, s{S_T0}, {v(v_tok)}")
    a.e(f"v_lshrrev_b32 {v(v_h)}, 5, {v(vl)}")
    a.e(f"v_lshlrev_b32 {v(v_xoff)}, 4, {v(vl)}")
    stt = R.get(20, 4)
    csr = R.get(48, 4)
    t0 = R.get(); t1 = R.get()
    srd_off(a, S_E2, P_WS, P_WS + 1, WS_ST, S_TOK * 80)
    a.e(f"v_mul_u32_u24 {v(t0)}, 80, {v(v_tok)}")
    for q in range(5):
        a.e(f"buffer_load_dwordx4 {v(stt+4*q,4)}, {v(t0)}, {s(S_E2,4)}, 0 offen offset:{16*q}")
    srd_off(a, S_E3, P_WS, P_WS + 1, WS_CS, 2 * F_ * 4)
    a.e(f"s_mul_i32 s57, s{S_CG}, 6")
    a.e(f"s_mul_i32 s{S_T0}, s{S_WN}, 3")
    a.e(f"s_add_u32 s57, s57, s{S_T0}")
    a.e(f"s_lshl_b32 s{S_T0}, s57, 6")
    a.e(f"s_add_u32 s{S_T1}, s{S_T0}, {F_*4}")
    a.e(f"v_lshlrev_b32 {v(t1)}, 4, {v(v_h)}")
    for t in range(3):
        for jj in range(2):
            a.e(f"buffer_load_dwordx4 {v(csr+16*t+4*jj,4)}, {v(t1)}, {s(S_E3,4)}, s{S_T0} offen offset:{64*t+32*jj}")
            a.e(f"buffer_load_dwordx4 {v(csr+16*t+8+4*jj,4)}, {v(t1)}, {s(S_E3,4)}, s{S_T1} offen offset:{64*t+32*jj}")
    c = Cfg()
    c.KT, c.KS, c.NB, c.U = D_, 64, 4, 2
    c.WM, c.WN, c.T = 4, 2, 3
    c.xorder, c.xstride, c.v_xoff, c.x_clamp = 'b', 1024, v_xoff, False
    c.s_col0, c.v_lane = S_COL0, vl
    c.C16, c.nmat, c.pitch, c.mode = 6, 2, F_ * 2, 'split'
    c.swap = [False] * 3
    c.hook_w = c.hook_x = None
    acc = gemm_engine(a, R, c)
    v_mu = R.get(); v_rs = R.get()
    for q in range(1, 10):
        a.e(f"v_add_f32 {v(stt)}, {v(stt)}, {v(stt+2*q)}")
        a.e(f"v_add_f32 {v(stt+1)}, {v(stt+1)}, {v(stt+2*q+1)}")
    ln_stats(a, stt, stt + 1, v_mu, v_rs, t0)
    a.e(f"s_mul_i32 s{S_T0}, s56, {F_*64}")
    a.e(f"s_lshl_b32 s{S_T1}, s57, 10")
    a.e(f"s_add_u32 s{S_T0}, s{S_T0}, s{S_T1}")
    a.e(f"s_add_u32 s{S_T0}, s{S_T0}, {WS_F}")
    srd_off(a, S_E0, P_WS, P_WS + 1, f"s{S_T0}", 3072)
    C1 = -2.0 * math.sqrt(2.0 / math.pi) * math.log2(math.e)
    C2 = C1 * 0.044715
    a.e(f"s_mov_b32 s{S_T0}, {f32(C1)}")
    a.e(f"s_mov_b32 s{S_T1}, {f32(C2)}")
    w = R.get(8, 4)
    pk = R.get(4, 4)
    vc1 = R.get()
    a.e(f"v_mov_b32 {v(vc1)}, s{S_T0}")
    for t in range(3):
        cs = csr + 16 * t
        for r in range(16):
            a.e(f"v_fma_f32 {v(cs+r)}, {v(v_mu)}, {v(cs+r)}, {v(acc[t]+r)}")
            a.e(f"v_mul_f32 {v(cs+r)}, {v(v_rs)}, {v(cs+r)}")
        for r in range(8):
            a.e(f"v_mul_f32 {v(w+r)}, {v(cs+r)}, {v(cs+r)}")
            a.e(f"v_fma_f32 {v(w+r)}, {v(w+r)}, s{S_T1}, {v(vc1)}")
            a.e(f"v_mul_f32 {v(w+r)}, {v(w+r)}, {v(cs+r)}")
        for r in range(8):
            a.e(f"v_exp_f32 {v(w+r)}, {v(w+r)}")
        a.e("s_nop 0")
        for r in range(8):
            a.e(f"v_add_f32 {v(w+r)}, 1.0, {v(w+r)}")
        for r in range(8):
            a.e(f"v_rcp_f32 {v(w+r)}, {v(w+r)}")
        a.e("s_nop 0")
        for r in range(8):
            a.e(f"v_mul_f32 {v(w+r)}, {v(w+r)}, {v(cs+r)}")
            a.e(f"v_mul_f32 {v(w+r)}, {v(w+r)}, {v(cs+8+r)}")
        for r in range(4):
            a.e(f"v_cvt_pk_bf16_f32 {v(pk+r)}, {v(w+2*r)}, {v(w+2*r+1)}")
        a.e(f"buffer_store_dwordx4 {v(pk,4)}, {v(v_xoff)}, {s(S_E0,4)}, 0 offen offset:{1024*t}")
        a.e("s_nop 1")
    a.lab(L_end)
    a.e("s_endpgm")
    return name, 256, 512, c.lds_bytes, R.hw


def main():
    ref = open(os.path.join(os.path.dirname(os.path.abspath(__file__)), "..", "cdna_kernels", NAME + ".s.ref")).read()
    head = [l for l in ref.splitlines() if l.startswith(";") and "@launch" not in l and "Override" not in l
            and "grid=ceil" not in l]
    a = Asm()
    ks = []
    ks.append(k1(a))
    ks.append(k2(a))
    ks.append(k35(a, 3))
    ks.append(k4(a))
    ks.append(k35(a, 5))
    out = "\n".join(head) + "\n"
    for (n, g, b, lds, nv) in ks:
        out += f"; @launch kernel={n} grid=({g},1,1) block=({b},1,1) lds={lds}\n"
    out += '.amdgcn_target "amdgcn-amd-amdhsa--gfx950"\n.text\n'
    out += a.text()
    out += '.section .rodata,"a"\n'
    for (n, g, b, lds, nv) in ks:
        out += kernel_desc(n, nv)
        print(f"{n}: grid={g} block={b} lds={lds} vgpr={nv}", file=sys.stderr)
    dst = sys.argv[1] if len(sys.argv) > 1 else os.path.join(os.path.dirname(os.path.abspath(__file__)), "..", "cdna_kernels", NAME + ".s")
    open(dst, "w").write(out)


if __name__ == "__main__":
    main()
```

```python
class Asm:
    def __init__(self):
        self.lines = []
        self.uid = 0

    def e(self, s):
        self.lines.append("    " + s)

    def c(self, s):
        self.lines.append("    ; " + s)

    def lab(self, name):
        self.lines.append(name + ":")

    def newlab(self, stem):
        self.uid += 1
        return f"L_{stem}_{self.uid}"

    def nop(self, n):
        while n > 0:
            k = min(n, 16)
            self.e(f"s_nop {k-1}")
            n -= k

    def text(self):
        return "\n".join(self.lines) + "\n"


def v(i, n=1):
    return f"v{i}" if n == 1 else f"v[{i}:{i+n-1}]"


def s(i, n=1):
    return f"s{i}" if n == 1 else f"s[{i}:{i+n-1}]"


class RegAlloc:
    def __init__(self, start, limit):
        self.next = start
        self.limit = limit
        self.hw = start

    def get(self, n=1, align=None):
        if align is None:
            align = 1 if n == 1 else (2 if n == 2 else 4)
        r = (self.next + align - 1) // align * align
        self.next = r + n
        assert self.next <= self.limit, f"register overflow {self.next} > {self.limit}"
        self.hw = max(self.hw, self.next)
        return r

    def mark(self):
        return self.next

    def release(self, m):
        self.next = m


def srd(a, d, base_lo, base_hi, nbytes):
    a.e(f"s_mov_b32 s{d}, s{base_lo}")
    a.e(f"s_and_b32 s{d+1}, s{base_hi}, 0xffff")
    a.e(f"s_mov_b32 s{d+2}, {nbytes}")
    a.e(f"s_mov_b32 s{d+3}, 0x00020000")


def srd_off(a, d, base_lo, base_hi, off, nbytes):
    a.e(f"s_add_u32 s{d}, s{base_lo}, {off}")
    a.e(f"s_addc_u32 s{d+1}, s{base_hi}, 0")
    a.e(f"s_and_b32 s{d+1}, s{d+1}, 0xffff")
    a.e(f"s_mov_b32 s{d+2}, {nbytes}")
    a.e(f"s_mov_b32 s{d+3}, 0x00020000")


def kernel_desc(name, nvgpr, nsgpr=102, nagpr=0):
    acc = (nvgpr + 3) // 4 * 4
    if nagpr:
        nvgpr = acc + nagpr
    return f""".p2align 6
.amdhsa_kernel {name}
  .amdhsa_next_free_vgpr {nvgpr}
  .amdhsa_next_free_sgpr {nsgpr}
  .amdhsa_accum_offset {acc}
  .amdhsa_group_segment_fixed_size 0
  .amdhsa_kernarg_size 96
  .amdhsa_user_sgpr_count 2
  .amdhsa_user_sgpr_kernarg_segment_ptr 1
  .amdhsa_system_sgpr_workgroup_id_x 1
.end_amdhsa_kernel
"""


import os as _os
DIAG = bool(_os.environ.get("DIAG"))
WS_DIAG = 200 * 1024 * 1024
_NST = 8


def stamp(a, i):
    if not DIAG:
        return
    a.e("s_memtime s[98:99]")
    a.e("s_waitcnt lgkmcnt(0)")
    a.e(f"s_mov_b32 s{88+i}, s98")


def stamp_begin(a):
    if not DIAG:
        return
    a.e("s_memrealtime s[96:97]")
    for i in range(8):
        a.e(f"s_mov_b32 s{88+i}, 0")
    a.e("s_waitcnt lgkmcnt(0)")
    stamp(a, 0)


def stamp_flush(a, kidx, p_ws, wave_sgpr):
    if not DIAG:
        return
    stamp(a, 7)
    a.e("s_memrealtime s[98:99]")
    a.e("s_waitcnt vmcnt(0) lgkmcnt(0)")
    a.e("s_mov_b64 exec, 1")
    a.e("s_lshl_b32 s100, s2, 3")
    a.e(f"s_add_u32 s100, s100, s{wave_sgpr}")
    a.e("s_lshl_b32 s100, s100, 6")
    a.e(f"s_add_u32 s100, s100, {WS_DIAG + kidx * 262144}")
    a.e(f"s_add_u32 s100, s{p_ws}, s100")
    a.e(f"s_addc_u32 s101, s{p_ws+1}, 0")
    for i in range(8):
        a.e(f"v_mov_b32 v{2+i}, s{88+i}")
    a.e("v_mov_b32 v10, s96")
    a.e("v_mov_b32 v11, s98")
    a.e("v_mov_b32 v1, 0")
    a.e("global_store_dwordx4 v1, v[2:5], s[100:101]")
    a.e("global_store_dwordx4 v1, v[6:9], s[100:101] offset:16")
    a.e("global_store_dwordx2 v1, v[10:11], s[100:101] offset:32")
    a.e("s_waitcnt vmcnt(0)")
```

```python
from asmlib import v, s, stamp

S_WSRD = 16
S_XSRD = 20
S_WAVE = 40
S_WM = 41
S_WN = 42
S_WK = 45
S_XK = 46
S_WLDS = 47
S_RBUF = 48
S_LOOP = 49
S_T0 = 50
S_T1 = 51
S_T2 = 52
S_WLDS0 = 53
S_XSTG = 54
S_XLDS = 60
OOB = 0x40000000


class Cfg:
    pass


def divmod_const(a, q, rem, x, d, tmp):
    if d & (d - 1) == 0:
        a.e(f"v_lshrrev_b32 {v(q)}, {d.bit_length()-1}, {v(x)}")
        a.e(f"v_and_b32 {v(rem)}, {d-1}, {v(x)}")
    else:
        m = (65536 + d - 1) // d
        for t in range(1024):
            assert (t * m) >> 16 == t // d
        a.e(f"v_mul_u32_u24 {v(q)}, {m}, {v(x)}")
        a.e(f"v_lshrrev_b32 {v(q)}, 16, {v(q)}")
        a.e(f"v_mul_u32_u24 {v(tmp)}, {d}, {v(q)}")
        a.e(f"v_sub_u32 {v(rem)}, {v(x)}, {v(tmp)}")


def rg(x, n):
    if isinstance(x, tuple):
        return f"a[{x[1]}:{x[1]+n-1}]"
    return v(x, n)


def gemm_engine(a, R, c):
    c.nagpr = 0
    KSn = c.KS // 16
    NST = c.KT // c.KS
    assert NST % c.U == 0 and KSn % 2 == 0
    NW = c.WM * c.WN
    T = c.T
    mode = c.mode
    if mode == 'plain':
        RB, nmat, Dm = 128, 1, c.KS * 128 // 1024
        mat1 = 0
        stage_bytes = Dm * 1024
        assert T * c.WN == 2
    elif mode == 'split':
        RB, nmat, Dm = 192, 2, c.KS * 192 // 1024
        mat1 = Dm * 1024 + 32
        stage_bytes = 2 * Dm * 1024 + 64
        assert T * c.WN == 6
    else:
        RB, nmat, Dm = 40, 2, 4
        assert c.KS == 64
        mat1 = 4096
        stage_bytes = 8192
    D = Dm * nmat // NW
    assert D * NW == Dm * nmat and Dm % D == 0
    wpm = Dm // D
    xlds = c.xmode == 'lds'
    wbytes = stage_bytes * c.NB
    if xlds:
        assert c.KS == 64 and c.WN == 1
        XB = 4096
        c.lds_bytes = wbytes + NW * c.U * XB
        DX = 4
    else:
        c.lds_bytes = wbytes
        DX = KSn

    acc = [R.get(16, 4) for _ in range(T)]
    if xlds:
        xf = [R.get(4, 4) for _ in range(2)]
        v_xa = [R.get() for _ in range(KSn)]
        v_xd = [R.get() for _ in range(4)]
    else:
        if getattr(c, 'x_agpr', False):
            xr = [[("a", 4 * (u * KSn + k)) for k in range(KSn)] for u in range(c.U)]
            c.nagpr = 4 * KSn * c.U
        else:
            xr = [[R.get(4, 4) for _ in range(KSn)] for _ in range(c.U)]
    wf = [[R.get(4, 4) for _ in range(T)] for _ in range(2)]
    v_dma = [R.get() for _ in range(D)]
    nrb = 2 if mode == 'plain' else 1
    v_rb = [R.get() for _ in range(nrb)]
    v_rd = [[R.get() for _ in range(nrb)] for _ in range(2)]
    t0 = R.get(); t1 = R.get(); t2 = R.get(); t3 = R.get()
    vl = c.v_lane

    a.c("---- engine setup: DMA source offsets")
    if nmat > 1:
        assert (wpm & (wpm - 1)) == 0
        a.e(f"s_and_b32 s{S_T0}, s{S_WAVE}, {wpm-1}")
        a.e(f"s_lshr_b32 s{S_T1}, s{S_WAVE}, {wpm.bit_length()-1}")
        a.e(f"s_mul_i32 s{S_WLDS0}, s{S_T1}, {mat1}")
    else:
        a.e(f"s_mov_b32 s{S_T0}, s{S_WAVE}")
        a.e(f"s_mov_b32 s{S_WLDS0}, 0")
    a.e(f"s_mul_i32 s{S_T0}, s{S_T0}, {D}")
    a.e(f"s_lshl_b32 s{S_T1}, s{S_T0}, 10")
    a.e(f"s_add_u32 s{S_WLDS0}, s{S_WLDS0}, s{S_T1}")
    a.e(f"s_lshl_b32 s{S_T0}, s{S_T0}, 6")
    for d in range(D):
        a.e(f"v_add_u32 {v(t0)}, s{S_T0}, {v(vl)}")
        if d:
            a.e(f"v_add_u32 {v(t0)}, {64*d}, {v(t0)}")
        if mode == 'kv':
            a.e(f"v_lshlrev_b32 {v(v_dma[d])}, 4, {v(t0)}")
            continue
        divmod_const(a, t1, t2, t0, RB // 16, t3)
        if mode == 'plain':
            a.e(f"v_bfe_u32 {v(t3)}, {v(t1)}, 1, 1")
            a.e(f"v_lshlrev_b32 {v(t3)}, 2, {v(t3)}")
            a.e(f"v_xor_b32 {v(t2)}, {v(t2)}, {v(t3)}")
        a.e(f"v_mul_u32_u24 {v(t1)}, {c.pitch}, {v(t1)}")
        a.e(f"v_lshl_add_u32 {v(t1)}, {v(t2)}, 4, {v(t1)}")
        a.e(f"v_add_u32 {v(v_dma[d])}, s{c.s_col0}, {v(t1)}")
    a.c("---- LDS read lane base")
    hmul = (2 if c.xorder == 'a' else 1) * 4 * RB
    rb0 = v_rb[0]
    a.e(f"v_lshrrev_b32 {v(t0)}, 5, {v(vl)}")
    a.e(f"v_mul_u32_u24 {v(rb0)}, {hmul}, {v(t0)}")
    a.e(f"v_bfe_u32 {v(t0)}, {v(vl)}, 4, 1")
    chmul = mat1 if mode == 'split' else 32
    a.e(f"v_mul_u32_u24 {v(t0)}, {chmul}, {v(t0)}")
    a.e(f"v_add_u32 {v(rb0)}, {v(rb0)}, {v(t0)}")
    a.e(f"v_bfe_u32 {v(t0)}, {v(vl)}, 2, 2")
    a.e(f"v_mul_u32_u24 {v(t1)}, {RB}, {v(t0)}")
    a.e(f"v_add_u32 {v(rb0)}, {v(rb0)}, {v(t1)}")
    a.e(f"v_and_b32 {v(t1)}, 3, {v(vl)}")
    a.e(f"v_lshl_add_u32 {v(rb0)}, {v(t1)}, 3, {v(rb0)}")
    if mode == 'plain':
        a.e(f"v_lshrrev_b32 {v(t0)}, 1, {v(t0)}")
        a.e(f"v_lshl_add_u32 {v(rb0)}, {v(t0)}, 6, {v(rb0)}")
        a.e(f"v_xor_b32 {v(v_rb[1])}, 64, {v(rb0)}")
        if c.WN == 2:
            a.e(f"s_lshl_b32 s{S_T0}, s{S_WN}, 6")
            a.e(f"v_xor_b32 {v(rb0)}, s{S_T0}, {v(rb0)}")
    elif mode == 'split' and c.WN > 1:
        a.e(f"s_mul_i32 s{S_T0}, s{S_WN}, {T*32}")
        a.e(f"v_add_u32 {v(rb0)}, s{S_T0}, {v(rb0)}")

    def rd_addr(bank, t):
        if mode == 'plain':
            return v_rd[bank][t if c.WN == 1 else 0], 0
        if mode == 'split':
            return v_rd[bank][0], 32 * t
        return v_rd[bank][0], mat1 * t

    def rd_imm(s_, q):
        return (4 * s_ + (q if c.xorder == 'a' else 2 * q)) * 4 * RB

    if xlds:
        a.c("---- X via LDS: DMA source offsets and fragment read addresses")
        for j in range(4):
            a.e(f"v_lshrrev_b32 {v(t0)}, 3, {v(vl)}")
            if j:
                a.e(f"v_add_u32 {v(t0)}, {8*j}, {v(t0)}")
            a.e(f"v_bfe_u32 {v(t1)}, {v(t0)}, 1, 3")
            a.e(f"v_and_b32 {v(t2)}, 7, {v(vl)}")
            a.e(f"v_xor_b32 {v(t1)}, {v(t1)}, {v(t2)}")
            a.e(f"v_mul_u32_u24 {v(t0)}, {c.xpitch}, {v(t0)}")
            a.e(f"v_lshl_add_u32 {v(t0)}, {v(t1)}, 4, {v(t0)}")
            a.e(f"v_add_u32 {v(v_xd[j])}, s{c.s_xrow0}, {v(t0)}")
        a.e(f"s_mul_i32 s{S_XLDS}, s{S_WAVE}, {c.U*XB}")
        a.e(f"s_add_u32 s{S_XLDS}, s{S_XLDS}, {wbytes}")
        for s_ in range(KSn):
            a.e(f"v_lshrrev_b32 {v(t0)}, 5, {v(vl)}")
            a.e(f"v_bfe_u32 {v(t1)}, {v(vl)}, 1, 3")
            a.e(f"v_xor_b32 {v(t0)}, {v(t0)}, {v(t1)}")
            if s_:
                a.e(f"v_xor_b32 {v(t0)}, {2*s_}, {v(t0)}")
            a.e(f"v_and_b32 {v(t1)}, 31, {v(vl)}")
            a.e(f"v_lshlrev_b32 {v(t1)}, 7, {v(t1)}")
            a.e(f"v_lshl_add_u32 {v(t0)}, {v(t0)}, 4, {v(t1)}")
            a.e(f"v_add_u32 {v(v_xa[s_])}, s{S_XLDS}, {v(t0)}")

    def dma_issue():
        for d in range(D):
            if d == 0:
                a.e(f"s_mov_b32 m0, s{S_WLDS}")
            else:
                a.e(f"s_add_u32 m0, s{S_WLDS}, {1024*d}")
            a.e("s_nop 0")
            a.e(f"buffer_load_dwordx4 {v(v_dma[d])}, {s(S_WSRD,4)}, s{S_WK} offen lds")
        a.e(f"s_add_u32 s{S_WK}, s{S_WK}, {c.KS*c.pitch}")
        a.e(f"s_add_u32 s{S_WLDS}, s{S_WLDS}, {stage_bytes}")
        a.e(f"s_add_u32 s{S_T0}, s{S_WLDS0}, {stage_bytes*c.NB}")
        a.e(f"s_cmp_ge_u32 s{S_WLDS}, s{S_T0}")
        a.e(f"s_cselect_b32 s{S_WLDS}, s{S_WLDS0}, s{S_WLDS}")

    def x_issue(u, s_):
        imm = s_ * c.xstride
        assert imm < 4096
        a.e(f"buffer_load_dwordx4 {rg(xr[u][s_],4)}, {v(c.v_xoff)}, {s(S_XSRD,4)}, s{S_XK} offen offset:{imm}")

    def xdma_issue(u):
        for j in range(4):
            a.e(f"s_add_u32 m0, s{S_XLDS}, {u*XB+1024*j}")
            a.e("s_nop 0")
            a.e(f"buffer_load_dwordx4 {v(v_xd[j])}, {s(S_XSRD,4)}, s{S_XK} offen lds")

    def x_advance():
        a.e(f"s_add_u32 s{S_XSTG}, s{S_XSTG}, 1")
        a.e(f"s_add_u32 s{S_XK}, s{S_XK}, {KSn*c.xstride}")
        if c.x_clamp:
            a.e(f"s_cmp_ge_u32 s{S_XSTG}, {NST}")
            a.e(f"s_cselect_b32 s{S_XK}, {OOB}, s{S_XK}")

    nxpro = c.U - 1 if xlds else c.U
    seq = []
    for st in range(max(c.NB - 1, nxpro)):
        if st < c.NB - 1:
            seq += [('D', st)] * D
        if st < nxpro:
            seq += [('X', st)] * DX

    def need_count(seq, st):
        last = max(i for i, tg in enumerate(seq) if tg[1] == st)
        return len(seq) - 1 - last

    n_pro = need_count(seq, 0)
    site = {}
    for i in range(NST):
        for s_ in range(KSn):
            if s_ == KSn - 1:
                if i + 1 < NST:
                    site[i % c.U] = min(site.get(i % c.U, 63), need_count(seq, i + 1))
                seq += [('D', i - 1 + c.NB)] * D
                if xlds:
                    seq += [('X', i - 1 + c.U)] * DX
            if not xlds:
                seq += [('X', i + c.U)]

    if getattr(c, 'early', None):
        c.early()
    a.c("---- prologue loads")
    a.e(f"s_mov_b32 s{S_WK}, 0")
    a.e(f"s_mov_b32 s{S_XK}, 0")
    a.e(f"s_mov_b32 s{S_XSTG}, 0")
    a.e(f"s_mov_b32 s{S_WLDS}, s{S_WLDS0}")
    for st in range(max(c.NB - 1, nxpro)):
        if st < c.NB - 1:
            dma_issue()
        if st < nxpro:
            if xlds:
                xdma_issue(st)
            else:
                for s_ in range(KSn):
                    x_issue(st, s_)
            x_advance()
    for t in range(T):
        for r in range(16):
            a.e(f"v_mov_b32 {v(acc[t]+r)}, 0")
    if getattr(c, 'pre_loop', None):
        c.pre_loop()
    for i_ in range(nrb):
        a.e(f"v_mov_b32 {v(v_rd[0][i_])}, {v(v_rb[i_])}")
    a.e(f"s_mov_b32 s{S_RBUF}, 0")
    stamp(a, 1)
    a.e(f"s_waitcnt vmcnt({min(n_pro,63)})")
    a.e("s_barrier")
    stamp(a, 2)
    nrd = 2 * T + (1 if xlds else 0)

    def rd_issue(p, s_, bank, u):
        if xlds:
            a.e(f"ds_read_b128 {v(xf[p],4)}, {v(v_xa[s_])} offset:{u*XB}")
        for t in range(T):
            va, ex = rd_addr(bank, t)
            for q in range(2):
                a.e(f"ds_read_b64_tr_b16 {v(wf[p][t]+2*q,2)}, {v(va)} offset:{rd_imm(s_,q)+ex}")

    rd_issue(0, 0, 0, 0)
    a.e(f"s_mov_b32 s{S_LOOP}, {NST//c.U}")
    L = a.newlab("kloop")
    a.lab(L)
    for u in range(c.U):
        cur = (u % 2) if c.U % 2 == 0 else 0
        nxt = ((u + 1) % 2) if c.U % 2 == 0 else 1
        for s_ in range(KSn):
            p = s_ % 2
            if s_ == KSn - 1:
                a.e(f"s_add_u32 s{S_RBUF}, s{S_RBUF}, {stage_bytes}")
                a.e(f"s_cmp_ge_u32 s{S_RBUF}, {stage_bytes*c.NB}")
                a.e(f"s_cselect_b32 s{S_RBUF}, 0, s{S_RBUF}")
                for i_ in range(nrb):
                    a.e(f"v_add_u32 {v(v_rd[nxt][i_])}, s{S_RBUF}, {v(v_rb[i_])}")
                a.e(f"s_waitcnt vmcnt({min(site.get(u, 0), 63)})")
                a.e("s_barrier")
                dma_issue()
                if xlds:
                    xdma_issue((u - 1) % c.U)
                    x_advance()
                rd_issue(1 - p, 0, nxt, (u + 1) % c.U)
            else:
                rd_issue(1 - p, s_ + 1, cur, u)
            a.e(f"s_waitcnt lgkmcnt({nrd})")
            X = xf[p] if xlds else xr[u][s_]
            for t in range(T):
                if c.swap[t]:
                    a.e(f"v_mfma_f32_32x32x16_bf16 {v(acc[t],16)}, {rg(X,4)}, {v(wf[p][t],4)}, {v(acc[t],16)}")
                else:
                    a.e(f"v_mfma_f32_32x32x16_bf16 {v(acc[t],16)}, {v(wf[p][t],4)}, {rg(X,4)}, {v(acc[t],16)}")
                if c.hook_w:
                    c.hook_w(t, wf[p][t])
            if c.hook_x:
                c.hook_x(X, u * KSn + s_)
            if not xlds:
                x_issue(u, s_)
                if s_ == KSn - 1:
                    x_advance()
        if c.U % 2 == 1:
            for i_ in range(nrb):
                a.e(f"v_mov_b32 {v(v_rd[0][i_])}, {v(v_rd[1][i_])}")
    if getattr(c, 'loop_tail', None):
        c.loop_tail()
    a.e(f"s_sub_u32 s{S_LOOP}, s{S_LOOP}, 1")
    a.e(f"s_cmp_lg_u32 s{S_LOOP}, 0")
    a.e(f"s_cbranch_scc1 {L}")
    stamp(a, 3)
    a.e("s_waitcnt vmcnt(0) lgkmcnt(0)")
    a.nop(16)
    stamp(a, 4)
    return acc
```

```python
import math
import struct
import sys
import os

sys.path.insert(0, os.path.dirname(os.path.abspath(__file__)))
from asmlib import Asm, RegAlloc, v, s, srd, srd_off, kernel_desc, stamp, stamp_begin, stamp_flush
from engine import (gemm_engine, Cfg, S_WSRD, S_XSRD, S_WAVE, S_WM, S_WN, S_T0, S_T1, S_T2)

NAME = "sequential_preLN__grouped_kv_mqa__geglu_ffn__prompt"

P_X, P_WQ, P_WK, P_WV, P_WO, P_BX, P_WG, P_WU, P_WD, P_OUT, P_DBG, P_WS = range(64, 88, 2)

S_TOK = 2048
D_ = 640
F_ = 1536
WS_Q = 0
WS_KV = WS_Q + S_TOK * D_ * 2
WS_O = WS_KV + 64 * 4096
WS_H = WS_O + S_TOK * D_ * 2
WS_ST = WS_H + S_TOK * D_ * 2
WS_CS = WS_ST + S_TOK * 80
WS_F = WS_CS + 16384
WS_END = WS_F + S_TOK * F_ * 2

S_RB = 43
S_CG = 44
S_COL0 = 55
S_E0 = 24
S_E1 = 28
S_E2 = 32
S_E3 = 36


def f32(x):
    return "0x%08x" % struct.unpack("<I", struct.pack("<f", x))[0]


QSCALE = (20 ** -0.5) * math.log2(math.e)
EPS = 1e-5


def header(a, name):
    a.lines.append(f".globl {name}")
    a.lines.append(".p2align 8")
    a.lines.append(f".type {name},@function")
    a.lab(name)


def load_ptrs(a):
    a.e("s_load_dwordx16 s[64:79], s[0:1], 0")
    a.e("s_load_dwordx8 s[80:87], s[0:1], 64")
    stamp_begin(a)


def wave_ids(a, vl, WN):
    a.e(f"v_lshrrev_b32 {v(vl)}, 6, v0")
    a.e("s_nop 0")
    a.e(f"v_readfirstlane_b32 s{S_WAVE}, {v(vl)}")
    a.e(f"v_and_b32 {v(vl)}, 63, v0")
    if WN == 1:
        a.e(f"s_mov_b32 s{S_WM}, s{S_WAVE}")
        a.e(f"s_mov_b32 s{S_WN}, 0")
    else:
        assert WN == 2
        a.e(f"s_lshr_b32 s{S_WM}, s{S_WAVE}, 1")
        a.e(f"s_and_b32 s{S_WN}, s{S_WAVE}, 1")


def xhalf_add(a, x, t0, t1):
    a.e(f"v_mov_b32 {v(t0)}, {v(x)}")
    a.e(f"v_mov_b32 {v(t1)}, {v(x)}")
    a.e("s_nop 1")
    a.e(f"v_permlane32_swap_b32 {v(t0)}, {v(t1)}")
    a.e("s_nop 1")
    a.e(f"v_add_f32 {v(x)}, {v(t0)}, {v(t1)}")


def ln_stats(a, s1, s2, mu_neg, rstd, t0):
    a.e(f"v_mul_f32 {v(mu_neg)}, {f32(-1.0/D_)}, {v(s1)}")
    a.e(f"v_mul_f32 {v(t0)}, {f32(1.0/D_)}, {v(s2)}")
    a.e(f"v_fma_f32 {v(t0)}, -{v(mu_neg)}, {v(mu_neg)}, {v(t0)}")
    a.e(f"v_max_f32 {v(t0)}, 0, {v(t0)}")
    a.e(f"v_add_f32 {v(t0)}, {f32(EPS)}, {v(t0)}")
    a.e(f"v_rsq_f32 {v(rstd)}, {v(t0)}")
    a.e("s_nop 0")


def k1(a):
    name = "k1_qkv_kernel"
    header(a, name)
    L_kv, L_cs, L_end = "K1_kv", "K1_cs", "K1_end"
    load_ptrs(a)
    a.e("s_cmp_ge_u32 s2, 200")
    a.e(f"s_cbranch_scc1 {L_end}")
    a.e("s_cmp_ge_u32 s2, 176")
    a.e(f"s_cbranch_scc1 {L_cs}")
    maxv = 0
    lds = 0
    for path in ("q", "kv"):
        R = RegAlloc(1, 256)
        vl = R.get()
        if path == "q":
            a.e("s_cmp_ge_u32 s2, 160")
            a.e(f"s_cbranch_scc1 {L_kv}")
            wave_ids(a, vl, 1)
            a.e("s_and_b32 s3, s2, 7")
            a.e("s_lshl_b32 s3, s3, 1")
            a.e(f"s_lshr_b32 s{S_CG}, s2, 3")
            a.e(f"s_cmp_ge_u32 s{S_CG}, 10")
            a.e(f"s_cselect_b32 s{S_T0}, 10, 0")
            a.e(f"s_cselect_b32 s{S_T1}, 1, 0")
            a.e(f"s_sub_u32 s{S_CG}, s{S_CG}, s{S_T0}")
            a.e(f"s_add_u32 s{S_RB}, s3, s{S_T1}")
            a.e(f"s_lshl_b32 s{S_COL0}, s{S_CG}, 7")
            a.e("s_waitcnt lgkmcnt(0)")
            srd(a, S_WSRD, P_WQ, P_WQ + 1, D_ * D_ * 2)
        else:
            a.lab(L_kv)
            wave_ids(a, vl, 1)
            a.e("s_and_b32 s3, s2, 7")
            a.e("s_lshl_b32 s3, s3, 1")
            a.e(f"s_sub_u32 s{S_T0}, s2, 160")
            a.e(f"s_lshr_b32 s{S_T0}, s{S_T0}, 3")
            a.e(f"s_add_u32 s{S_RB}, s3, s{S_T0}")
            a.e(f"s_mov_b32 s{S_COL0}, 0")
            a.e("s_waitcnt lgkmcnt(0)")
            a.e(f"s_cmp_ge_u32 s{S_WAVE}, 2")
            a.e(f"s_cselect_b32 s{S_WSRD}, s{P_WV}, s{P_WK}")
            a.e(f"s_cselect_b32 s{S_WSRD+1}, s{P_WV+1}, s{P_WK+1}")
            a.e(f"s_and_b32 s{S_WSRD+1}, s{S_WSRD+1}, 0xffff")
            a.e(f"s_mov_b32 s{S_WSRD+2}, {D_*20*2}")
            a.e(f"s_mov_b32 s{S_WSRD+3}, 0x00020000")
        srd(a, S_XSRD, P_X, P_X + 1, S_TOK * D_ * 2)
        a.e(f"s_lshl_b32 s{S_T0}, s{S_RB}, 2")
        a.e(f"s_add_u32 s56, s{S_T0}, s{S_WM}")
        v_tok = R.get()
        v_h = R.get()
        a.e(f"v_and_b32 {v(v_tok)}, 31, {v(vl)}")
        a.e(f"s_lshl_b32 s{S_T0}, s56, 5")
        a.e(f"v_add_u32 {v(v_tok)}, s{S_T0}, {v(v_tok)}")
        a.e(f"v_lshrrev_b32 {v(v_h)}, 5, {v(vl)}")
        a.e(f"s_mul_i32 s57, s56, {32*D_*2}")
        v_ones = R.get()
        v_s1 = R.get(); v_s2 = R.get()
        v_cs = [R.get(), R.get()]
        a.e(f"v_mov_b32 {v(v_ones)}, 0x3f803f80")
        for r_ in (v_s1, v_s2, v_cs[0], v_cs[1]):
            a.e(f"v_mov_b32 {v(r_)}, 0")

        c = Cfg()
        c.KT, c.KS, c.NB, c.U = D_, 64, 6, 5
        c.WM, c.WN, c.T = 4, 1, 2
        c.xmode, c.xpitch, c.s_xrow0 = 'lds', D_ * 2, 57
        c.xorder, c.xstride, c.x_clamp = 'a', 32, True
        c.s_col0, c.v_lane = S_COL0, vl
        if path == "q":
            c.pitch, c.mode = D_ * 2, 'plain'
            c.swap = [False, False]
        else:
            c.pitch, c.mode = 40, 'kv'
            c.swap = [False, True]

        def hook_w(t, w):
            for j in range(4):
                a.e(f"v_dot2_f32_bf16 {v(v_cs[t])}, {v(w+j)}, {v(v_ones)}, {v(v_cs[t])}")

        def hook_x(x, ks):
            for j in range(4):
                a.e(f"v_dot2_f32_bf16 {v(v_s1)}, {v(x+j)}, {v(v_ones)}, {v(v_s1)}")
                a.e(f"v_dot2_f32_bf16 {v(v_s2)}, {v(x+j)}, {v(x+j)}, {v(v_s2)}")

        c.hook_w, c.hook_x = hook_w, hook_x
        acc = gemm_engine(a, R, c)
        scr = c.lds_bytes
        lds = max(lds, scr + 4096)
        t0 = R.get(); t1 = R.get()
        v_mu = R.get(); v_rs = R.get()
        v_sa = R.get()
        xhalf_add(a, v_s1, t0, t1)
        xhalf_add(a, v_s2, t0, t1)
        xhalf_add(a, v_cs[0], t0, t1)
        xhalf_add(a, v_cs[1], t0, t1)
        ln_stats(a, v_s1, v_s2, v_mu, v_rs, t0)
        a.e(f"s_lshl_b32 s{S_T0}, s{S_WAVE}, 10")
        a.e(f"s_add_u32 s{S_T0}, s{S_T0}, {scr}")
        a.e(f"v_and_b32 {v(v_sa)}, 31, {v(vl)}")
        a.e(f"v_lshlrev_b32 {v(v_sa)}, 2, {v(v_sa)}")
        a.e(f"v_add_u32 {v(v_sa)}, s{S_T0}, {v(v_sa)}")
        a.e(f"ds_write_b32 {v(v_sa)}, {v(v_cs[0])} offset:0")
        a.e(f"ds_write_b32 {v(v_sa)}, {v(v_cs[1])} offset:128")
        a.e(f"ds_write_b32 {v(v_sa)}, {v(v_mu)} offset:256")
        a.e(f"ds_write_b32 {v(v_sa)}, {v(v_rs)} offset:384")
        v_ra = R.get()
        a.e(f"v_lshlrev_b32 {v(v_ra)}, 4, {v(v_h)}")
        a.e(f"v_add_u32 {v(v_ra)}, s{S_T0}, {v(v_ra)}")
        a.e("s_waitcnt lgkmcnt(0)")
        csr = R.get(16, 4)
        pk = R.get(8, 4)
        if path == "q":
            srd_off(a, S_E0, P_WS, P_WS + 1, WS_Q, S_TOK * D_ * 2)
            v_qa = R.get()
            a.e(f"v_mul_u32_u24 {v(v_qa)}, {D_*2}, {v(v_tok)}")
            a.e(f"v_lshl_add_u32 {v(v_qa)}, {v(v_h)}, 3, {v(v_qa)}")
            a.e(f"v_add_u32 {v(v_qa)}, s{S_COL0}, {v(v_qa)}")
            a.e(f"v_mul_f32 {v(v_rs)}, {f32(QSCALE)}, {v(v_rs)}")
            for t in range(2):
                for j in range(4):
                    a.e(f"ds_read_b128 {v(csr+4*j,4)}, {v(v_ra)} offset:{t*128+32*j}")
                a.e("s_waitcnt lgkmcnt(0)")
                for r in range(16):
                    a.e(f"v_fma_f32 {v(csr+r)}, {v(v_mu)}, {v(csr+r)}, {v(acc[t]+r)}")
                    a.e(f"v_mul_f32 {v(csr+r)}, {v(v_rs)}, {v(csr+r)}")
                for r in range(8):
                    a.e(f"v_cvt_pk_bf16_f32 {v(pk+r)}, {v(csr+2*r)}, {v(csr+2*r+1)}")
                for j in range(4):
                    a.e(f"buffer_store_dwordx2 {v(pk+2*j,2)}, {v(v_qa)}, {s(S_E0,4)}, 0 offen offset:{t*64+16*j}")
                a.e("s_nop 1")
            stamp_flush(a, 0, P_WS, S_WAVE)
            a.e("s_endpgm")
        else:
            a.e(f"s_lshl_b32 s{S_T1}, s56, 12")
            a.e(f"s_add_u32 s{S_T1}, s{S_T1}, {WS_KV}")
            srd_off(a, S_E0, P_WS, P_WS + 1, f"s{S_T1}", 4096)
            for j in range(3):
                a.e(f"ds_read_b128 {v(csr+4*j,4)}, {v(v_ra)} offset:{32*j}")
            a.e("s_waitcnt lgkmcnt(0)")
            for r in range(12):
                a.e(f"v_fma_f32 {v(csr+r)}, {v(v_mu)}, {v(csr+r)}, {v(acc[0]+r)}")
                a.e(f"v_mul_f32 {v(csr+r)}, {v(v_rs)}, {v(csr+r)}")
            for r in range(6):
                a.e(f"v_cvt_pk_bf16_f32 {v(pk+r)}, {v(csr+2*r)}, {v(csr+2*r+1)}")
            a.e(f"v_cmp_eq_u32 vcc, 1, {v(v_h)}")
            a.e(f"v_mov_b32 {v(t0)}, 0x3f803f80")
            a.e(f"v_mov_b32 {v(t1)}, 0x00003f80")
            a.e(f"v_cndmask_b32 {v(pk+4)}, {v(pk+4)}, {v(t0)}, vcc")
            a.e(f"v_cndmask_b32 {v(pk+5)}, {v(pk+5)}, {v(t1)}, vcc")
            v_ka = R.get()
            a.e(f"v_and_b32 {v(v_ka)}, 31, {v(vl)}")
            a.e(f"v_lshlrev_b32 {v(v_ka)}, 4, {v(v_ka)}")
            a.e(f"v_lshl_add_u32 {v(v_ka)}, {v(v_h)}, 3, {v(v_ka)}")
            a.e(f"buffer_store_dwordx2 {v(pk,2)}, {v(v_ka)}, {s(S_E0,4)}, 0 offen offset:0")
            a.e(f"buffer_store_dwordx2 {v(pk+2,2)}, {v(v_ka)}, {s(S_E0,4)}, 0 offen offset:512")
            a.e(f"v_lshlrev_b32 {v(v_ka)}, 3, {v(vl)}")
            a.e(f"buffer_store_dwordx2 {v(pk+4,2)}, {v(v_ka)}, {s(S_E0,4)}, 0 offen offset:1024")
            rsr = R.get(16, 4)
            for j in range(4):
                a.e(f"ds_read_b128 {v(csr+4*j,4)}, {v(v_ra)} offset:{256+32*j}")
                a.e(f"ds_read_b128 {v(rsr+4*j,4)}, {v(v_ra)} offset:{384+32*j}")
            a.e("s_waitcnt lgkmcnt(0)")
            a.e(f"v_and_b32 {v(t0)}, 31, {v(vl)}")
            a.e(f"v_cmp_gt_u32 s[58:59], 20, {v(t0)}")
            a.e(f"v_cmp_eq_u32 vcc, 20, {v(t0)}")
            a.e(f"v_mov_b32 {v(t1)}, 0")
            a.e("s_nop 1")
            a.e(f"v_cndmask_b32 {v(t1)}, {v(t1)}, 1.0, vcc")
            for r in range(16):
                a.e(f"v_fma_f32 {v(csr+r)}, {v(csr+r)}, {v(v_cs[1])}, {v(acc[1]+r)}")
                a.e(f"v_mul_f32 {v(csr+r)}, {v(rsr+r)}, {v(csr+r)}")
                a.e(f"v_cndmask_b32 {v(csr+r)}, {v(t1)}, {v(csr+r)}, s[58:59]")
            a.e("s_nop 1")
            for r in range(8):
                a.e(f"v_cvt_pk_bf16_f32 {v(pk+r)}, {v(csr+2*r)}, {v(csr+2*r+1)}")
            a.e(f"v_lshlrev_b32 {v(v_ka)}, 4, {v(vl)}")
            a.e(f"buffer_store_dwordx4 {v(pk,4)}, {v(v_ka)}, {s(S_E0,4)}, 0 offen offset:2048")
            a.e(f"buffer_store_dwordx4 {v(pk+4,4)}, {v(v_ka)}, {s(S_E0,4)}, 0 offen offset:3072")
            stamp_flush(a, 0, P_WS, S_WAVE)
            a.e("s_endpgm")
        maxv = max(maxv, R.hw)

    a.lab(L_cs)
    R = RegAlloc(1, 256)
    vl = R.get()
    wave_ids(a, vl, 1)
    a.e("s_sub_u32 s3, s2, 176")
    a.e("s_cmp_ge_u32 s3, 12")
    a.e(f"s_cselect_b32 s{S_T0}, 12, 0")
    a.e(f"s_cselect_b32 s{S_T2}, {F_*4}, 0")
    a.e(f"s_sub_u32 s{S_CG}, s3, s{S_T0}")
    a.e("s_waitcnt lgkmcnt(0)")
    a.e("s_cmp_ge_u32 s3, 12")
    a.e(f"s_cselect_b32 s{S_WSRD}, s{P_WU}, s{P_WG}")
    a.e(f"s_cselect_b32 s{S_WSRD+1}, s{P_WU+1}, s{P_WG+1}")
    a.e(f"s_and_b32 s{S_WSRD+1}, s{S_WSRD+1}, 0xffff")
    a.e(f"s_mov_b32 s{S_WSRD+2}, {D_*F_*2}")
    a.e(f"s_mov_b32 s{S_WSRD+3}, 0x00020000")
    v_off = R.get(); t0 = R.get(); t1 = R.get()
    c10 = R.get(); c01 = R.get()
    accs = R.get(8, 4)
    a.e(f"v_lshrrev_b32 {v(t0)}, 4, {v(vl)}")
    a.e(f"s_lshl_b32 s{S_T0}, s{S_WAVE}, 2")
    a.e(f"v_add_u32 {v(t0)}, s{S_T0}, {v(t0)}")
    a.e(f"v_mul_u32_u24 {v(v_off)}, {F_*2}, {v(t0)}")
    a.e(f"v_and_b32 {v(t1)}, 15, {v(vl)}")
    a.e(f"v_lshl_add_u32 {v(v_off)}, {v(t1)}, 4, {v(v_off)}")
    a.e(f"s_lshl_b32 s{S_T0}, s{S_CG}, 8")
    a.e(f"v_add_u32 {v(v_off)}, s{S_T0}, {v(v_off)}")
    a.e(f"v_mov_b32 {v(c10)}, 0x00003f80")
    a.e(f"v_mov_b32 {v(c01)}, 0x3f800000")
    for e_ in range(8):
        a.e(f"v_mov_b32 {v(accs+e_)}, 0")
    buf = R.get(160, 4)
    a.e(f"s_mov_b32 s{S_T1}, 0")
    for it in range(40):
        a.e(f"buffer_load_dwordx4 {v(buf+4*it,4)}, {v(v_off)}, {s(S_WSRD,4)}, s{S_T1} offen")
        a.e(f"s_add_u32 s{S_T1}, s{S_T1}, {16*F_*2}")
    for it in range(40):
        a.e(f"s_waitcnt vmcnt({39-it})")
        for j in range(4):
            a.e(f"v_dot2_f32_bf16 {v(accs+2*j)}, {v(buf+4*it+j)}, {v(c10)}, {v(accs+2*j)}")
            a.e(f"v_dot2_f32_bf16 {v(accs+2*j+1)}, {v(buf+4*it+j)}, {v(c01)}, {v(accs+2*j+1)}")
    a.e("s_nop 3")
    a.e(f"v_lshlrev_b32 {v(t0)}, 9, {v(t0)}")
    a.e(f"v_lshl_add_u32 {v(t0)}, {v(t1)}, 5, {v(t0)}")
    a.e(f"ds_write_b128 {v(t0)}, {v(accs,4)} offset:0")
    a.e(f"ds_write_b128 {v(t0)}, {v(accs+4,4)} offset:16")
    a.e("s_waitcnt lgkmcnt(0)")
    a.e("s_barrier")
    a.e(f"s_cmp_ge_u32 s{S_WAVE}, 2")
    a.e(f"s_cbranch_scc1 {L_end}")
    a.e(f"v_lshlrev_b32 {v(t0)}, 2, v0")
    for g in range(16):
        a.e(f"ds_read_b32 {v(buf+g)}, {v(t0)} offset:{512*g}")
    a.e("s_waitcnt lgkmcnt(0)")
    for g in range(1, 16):
        a.e(f"v_add_f32 {v(buf)}, {v(buf)}, {v(buf+g)}")
    a.e(f"s_lshl_b32 s{S_T0}, s{S_CG}, 9")
    a.e(f"s_add_u32 s{S_T0}, s{S_T0}, s{S_T2}")
    a.e(f"s_add_u32 s{S_T0}, s{S_T0}, {WS_CS}")
    srd_off(a, S_E0, P_WS, P_WS + 1, f"s{S_T0}", 512)
    a.e(f"buffer_store_dword {v(buf)}, {v(t0)}, {s(S_E0,4)}, 0 offen")
    stamp_flush(a, 0, P_WS, S_WAVE)
    a.lab(L_end)
    a.e("s_endpgm")
    maxv = max(maxv, R.hw)
    return name, 200, 256, lds, maxv, 0


def k2(a):
    name = "k2_attn_kernel"
    header(a, name)
    L_end = "K2_end"
    CH = 8
    CHB = CH * 4096
    NBUF = 3
    FLAG = NBUF * CHB
    load_ptrs(a)
    a.e("s_cmp_ge_u32 s2, 256")
    a.e(f"s_cbranch_scc1 {L_end}")
    R = RegAlloc(1, 256)
    vl = R.get()
    a.e(f"v_lshrrev_b32 {v(vl)}, 6, v0")
    a.e("s_nop 0")
    a.e(f"v_readfirstlane_b32 s{S_WAVE}, {v(vl)}")
    a.e(f"v_and_b32 {v(vl)}, 63, v0")
    a.e("s_lshl_b32 s3, s2, 3")
    a.e(f"s_add_u32 s3, s3, s{S_WAVE}")
    S_HD, S_QT = 43, 44
    S_KVO, S_DST, S_CNT, S_MODE, S_RB0 = 45, 46, 47, 48, 49
    S_KV = 16
    S_QS = 20
    S_OS = 24
    a.e(f"s_and_b32 s{S_HD}, s3, 31")
    a.e(f"s_lshr_b32 s{S_QT}, s3, 5")
    a.e("s_waitcnt lgkmcnt(0)")
    srd_off(a, S_KV, P_WS, P_WS + 1, WS_KV, 64 * 4096)
    srd_off(a, S_QS, P_WS, P_WS + 1, WS_Q, S_TOK * D_ * 2)
    srd_off(a, S_OS, P_WS, P_WS + 1, WS_O, S_TOK * D_ * 2)
    v_h = R.get(); v_m = R.get()
    v_l16 = R.get()
    v_l8 = R.get()
    v_dsrc = R.get()
    t0 = R.get(); t1 = R.get(); t2 = R.get(); t3 = R.get()
    a.e(f"v_lshrrev_b32 {v(v_h)}, 5, {v(vl)}")
    a.e(f"v_and_b32 {v(v_m)}, 31, {v(vl)}")
    a.e(f"v_lshlrev_b32 {v(v_l16)}, 4, {v(vl)}")
    a.e(f"v_lshlrev_b32 {v(v_l8)}, 3, {v(vl)}")
    a.e(f"s_lshl_b32 s{S_T0}, s{S_WAVE}, 12")
    a.e(f"v_add_u32 {v(v_dsrc)}, s{S_T0}, {v(v_l16)}")
    Q0 = R.get(4, 4); Q1 = R.get(2, 2); Q1raw = R.get(2, 2)
    SS = [R.get(16, 4), R.get(16, 4)]
    PP = R.get(8, 4)
    O = R.get(16, 4)
    K0 = [R.get(4, 4), R.get(4, 4)]
    K1 = [R.get(2, 2), R.get(2, 2)]
    V0 = [R.get(4, 4), R.get(4, 4)]
    V1 = [R.get(4, 4), R.get(4, 4)]
    rd16 = [R.get(), R.get()]
    rd8 = [R.get(), R.get()]
    a.e(f"s_lshl_b32 s{S_T0}, s{S_QT}, 5")
    a.e(f"v_add_u32 {v(t0)}, s{S_T0}, {v(v_m)}")
    a.e(f"v_mul_u32_u24 {v(t0)}, {D_*2}, {v(t0)}")
    a.e(f"s_mul_i32 s{S_T0}, s{S_HD}, 40")
    a.e(f"v_add_u32 {v(t0)}, s{S_T0}, {v(t0)}")
    a.e(f"v_lshl_add_u32 {v(t1)}, {v(v_h)}, 4, {v(t0)}")
    a.e(f"buffer_load_dwordx4 {v(Q0,4)}, {v(t1)}, {s(S_QS,4)}, 0 offen")
    a.e(f"buffer_load_dwordx2 {v(Q1raw,2)}, {v(t0)}, {s(S_QS,4)}, 0 offen offset:32")
    a.e(f"s_mov_b32 s{S_MODE}, 0")
    a.e(f"v_mov_b32 {v(t2)}, {FLAG}")
    a.e(f"v_mov_b32 {v(t3)}, 0")
    a.e(f"ds_write_b32 {v(t2)}, {v(t3)}")

    def dma_chunk():
        for d in range(4):
            a.e(f"s_add_u32 m0, s{S_DST}, {1024*d}")
            a.e(f"s_add_u32 s{S_T0}, s{S_KVO}, {1024*d}")
            a.e(f"buffer_load_dwordx4 {v(v_dsrc)}, {s(S_KV,4)}, s{S_T0} offen lds")
        a.e(f"s_add_u32 s{S_KVO}, s{S_KVO}, {CHB}")
        a.e(f"s_add_u32 s{S_DST}, s{S_DST}, {CHB}")
        a.e(f"s_lshl_b32 s{S_T0}, s{S_WAVE}, 12")
        a.e(f"s_add_u32 s{S_T1}, s{S_T0}, {NBUF*CHB}")
        a.e(f"s_cmp_ge_u32 s{S_DST}, s{S_T1}")
        a.e(f"s_cselect_b32 s{S_DST}, s{S_T0}, s{S_DST}")

    def rdK(p, tile, b):
        a.e(f"ds_read_b128 {v(K0[p],4)}, {v(rd16[b])} offset:{tile*4096}")
        a.e(f"ds_read_b64 {v(K1[p],2)}, {v(rd8[b])} offset:{tile*4096+1024}")

    def rdV(p, tile, b):
        a.e(f"ds_read_b128 {v(V0[p],4)}, {v(rd16[b])} offset:{tile*4096+2048}")
        a.e(f"ds_read_b128 {v(V1[p],4)}, {v(rd16[b])} offset:{tile*4096+3072}")

    def set_q1(mreg):
        a.e(f"v_and_b32 {v(t0)}, 0xffff0000, {v(mreg)}")
        a.e(f"v_sub_f32 {v(t1)}, {v(mreg)}, {v(t0)}")
        a.e(f"v_and_b32 {v(t2)}, 0xffff0000, {v(t1)}")
        a.e(f"v_sub_f32 {v(t1)}, {v(t1)}, {v(t2)}")
        a.e(f"v_xor_b32 {v(t0)}, 0x80000000, {v(t0)}")
        a.e(f"v_xor_b32 {v(t2)}, 0x80000000, {v(t2)}")
        a.e(f"v_xor_b32 {v(t1)}, 0x80000000, {v(t1)}")
        a.e(f"v_lshrrev_b32 {v(t0)}, 16, {v(t0)}")
        a.e(f"v_or_b32 {v(t0)}, {v(t0)}, {v(t2)}")
        a.e(f"v_lshrrev_b32 {v(t1)}, 16, {v(t1)}")
        a.e(f"v_cmp_eq_u32 vcc, 1, {v(v_h)}")
        a.e("s_nop 1")
        a.e(f"v_cndmask_b32 {v(Q1)}, {v(Q1raw)}, {v(t0)}, vcc")
        a.e(f"v_cndmask_b32 {v(Q1+1)}, {v(Q1raw+1)}, {v(t1)}, vcc")
        a.e("s_nop 1")

    def max16(src, dst):
        a.e(f"v_max3_f32 {v(dst)}, {v(src)}, {v(src+1)}, {v(src+2)}")
        for i in range(3, 15, 2):
            a.e(f"v_max3_f32 {v(dst)}, {v(dst)}, {v(src+i)}, {v(src+i+1)}")
        a.e(f"v_max_f32 {v(dst)}, {v(dst)}, {v(src+15)}")

    def xhalf_max(x):
        a.e(f"v_mov_b32 {v(t0)}, {v(x)}")
        a.e(f"v_mov_b32 {v(t1)}, {v(x)}")
        a.e("s_nop 1")
        a.e(f"v_permlane32_swap_b32 {v(t0)}, {v(t1)}")
        a.e("s_nop 1")
        a.e(f"v_max_f32 {v(x)}, {v(t0)}, {v(t1)}")

    v_mx = R.get()
    L_main = "K2_main"
    L_skipm = "K2_skipm"
    a.lab(L_main)
    a.e(f"s_mov_b32 s{S_KVO}, 0")
    a.e(f"s_lshl_b32 s{S_DST}, s{S_WAVE}, 12")
    dma_chunk()
    dma_chunk()
    a.e(f"v_mov_b32 {v(rd16[0])}, {v(v_l16)}")
    a.e(f"v_mov_b32 {v(rd8[0])}, {v(v_l8)}")
    a.e(f"v_add_u32 {v(rd16[1])}, {CHB}, {v(v_l16)}")
    a.e(f"v_add_u32 {v(rd8[1])}, {CHB}, {v(v_l8)}")
    a.e(f"s_mov_b32 s{S_RB0}, {CHB}")
    for r in range(16):
        a.e(f"v_mov_b32 {v(O+r)}, 0")
    stamp(a, 1)
    a.e("s_waitcnt vmcnt(4) lgkmcnt(0)")
    a.e("s_barrier")
    stamp(a, 2)
    rdK(0, 0, 0)
    rdK(1, 1, 0)
    rdV(0, 0, 0)
    a.e(f"s_cmp_lg_u32 s{S_MODE}, 0")
    a.e(f"s_cbranch_scc1 {L_skipm}")
    a.e(f"v_cmp_eq_u32 vcc, 1, {v(v_h)}")
    a.e("s_nop 1")
    a.e(f"v_cndmask_b32 {v(Q1)}, {v(Q1raw)}, 0, vcc")
    a.e(f"v_cndmask_b32 {v(Q1+1)}, {v(Q1raw+1)}, 0, vcc")
    a.e("s_waitcnt lgkmcnt(0)")
    a.e(f"v_mfma_f32_32x32x16_bf16 {v(SS[0],16)}, {v(K0[0],4)}, {v(Q0,4)}, 0")
    a.e(f"v_mfma_f32_32x32x8_bf16 {v(SS[0],16)}, {v(K1[0],2)}, {v(Q1,2)}, {v(SS[0],16)}")
    a.nop(16)
    max16(SS[0], v_mx)
    xhalf_max(v_mx)
    set_q1(v_mx)
    a.lab(L_skipm)
    a.e("s_waitcnt lgkmcnt(0)")
    a.e(f"v_mfma_f32_32x32x16_bf16 {v(SS[0],16)}, {v(K0[0],4)}, {v(Q0,4)}, 0")
    a.e(f"v_mfma_f32_32x32x8_bf16 {v(SS[0],16)}, {v(K1[0],2)}, {v(Q1,2)}, {v(SS[0],16)}")
    a.nop(16)
    a.e(f"s_mov_b32 s{S_CNT}, 8")
    stamp(a, 3)
    L_loop = "K2_loop"
    a.lab(L_loop)
    for j in range(CH):
        p = j % 2
        Sc, Sn = SS[p], SS[1 - p]
        if j == CH - 2:
            a.e("s_waitcnt vmcnt(0)")
            a.e("s_barrier")
            dma_chunk()
        a.e("s_waitcnt lgkmcnt(2)")
        a.e(f"v_mfma_f32_32x32x16_bf16 {v(Sn,16)}, {v(K0[1-p],4)}, {v(Q0,4)}, 0")
        for i in range(0, 4):
            a.e(f"v_exp_f32 {v(Sc+i)}, {v(Sc+i)}")
        a.e(f"v_mfma_f32_32x32x8_bf16 {v(Sn,16)}, {v(K1[1-p],2)}, {v(Q1,2)}, {v(Sn,16)}")
        if j + 2 < CH:
            rdK(p, j + 2, 0)
        else:
            rdK(p, j + 2 - CH, 1)
        for i in range(4, 8):
            a.e(f"v_exp_f32 {v(Sc+i)}, {v(Sc+i)}")
        for i in range(4):
            a.e(f"v_cvt_pk_bf16_f32 {v(PP+i)}, {v(Sc+2*i)}, {v(Sc+2*i+1)}")
        for i in range(8, 10):
            a.e(f"v_exp_f32 {v(Sc+i)}, {v(Sc+i)}")
        a.e("s_waitcnt lgkmcnt(2)")
        a.e(f"v_mfma_f32_32x32x16_bf16 {v(O,16)}, {v(V0[p],4)}, {v(PP,4)}, {v(O,16)}")
        for i in range(10, 16):
            a.e(f"v_exp_f32 {v(Sc+i)}, {v(Sc+i)}")
        if j + 1 < CH:
            rdV(1 - p, j + 1, 0)
        else:
            rdV(1 - p, j + 1 - CH, 1)
        for i in range(4, 8):
            a.e(f"v_cvt_pk_bf16_f32 {v(PP+i)}, {v(Sc+2*i)}, {v(Sc+2*i+1)}")
        if j == CH - 1:
            a.e(f"v_mov_b32 {v(rd16[0])}, {v(rd16[1])}")
            a.e(f"v_mov_b32 {v(rd8[0])}, {v(rd8[1])}")
            a.e(f"s_add_u32 s{S_RB0}, s{S_RB0}, {CHB}")
            a.e(f"s_cmp_ge_u32 s{S_RB0}, {NBUF*CHB}")
            a.e(f"s_cselect_b32 s{S_RB0}, 0, s{S_RB0}")
            a.e(f"v_add_u32 {v(rd16[1])}, s{S_RB0}, {v(v_l16)}")
            a.e(f"v_add_u32 {v(rd8[1])}, s{S_RB0}, {v(v_l8)}")
        else:
            a.e("s_nop 1")
        a.e(f"v_mfma_f32_32x32x16_bf16 {v(O,16)}, {v(V1[p],4)}, {v(PP+4,4)}, {v(O,16)}")
    a.e(f"s_sub_u32 s{S_CNT}, s{S_CNT}, 1")
    a.e(f"s_cmp_lg_u32 s{S_CNT}, 0")
    a.e(f"s_cbranch_scc1 {L_loop}")
    a.e("s_waitcnt vmcnt(0) lgkmcnt(0)")
    a.nop(16)
    stamp(a, 4)
    v_l = R.get()
    a.e(f"v_mov_b32 {v(t0)}, {v(O+8)}")
    a.e(f"v_mov_b32 {v(v_l)}, {v(O+8)}")
    a.e("s_nop 1")
    a.e(f"v_permlane32_swap_b32 {v(t0)}, {v(v_l)}")
    a.e("s_nop 1")
    L_ok = "K2_ok"
    a.e(f"s_cmp_lg_u32 s{S_MODE}, 0")
    a.e(f"s_cbranch_scc1 {L_ok}")
    a.e(f"v_max3_f32 {v(t0)}, abs({v(O)}), abs({v(O+1)}), abs({v(O+2)})")
    for i in range(3, 11, 2):
        a.e(f"v_max3_f32 {v(t0)}, {v(t0)}, abs({v(O+i)}), abs({v(O+i+1)})")
    a.e(f"v_max_f32 {v(t0)}, {v(t0)}, abs({v(O+11)})")
    a.e(f"v_mov_b32 {v(t1)}, {f32(2.0**64)}")
    a.e(f"v_mov_b32 {v(t2)}, {f32(2.0**120)}")
    a.e(f"v_cmp_nlt_f32 s[58:59], {v(v_l)}, {v(t1)}")
    a.e(f"v_cmp_nlt_f32 vcc, {v(t0)}, {v(t2)}")
    a.e(f"v_add_f32 {v(t3)}, {v(O)}, {v(O+1)}")
    for i in range(2, 12):
        a.e(f"v_add_f32 {v(t3)}, {v(t3)}, {v(O+i)}")
    a.e("s_or_b64 s[58:59], s[58:59], vcc")
    a.e(f"v_cmp_u_f32 vcc, {v(t3)}, {v(t3)}")
    a.e("s_nop 1")
    a.e("s_or_b64 s[58:59], s[58:59], vcc")
    a.e("s_cmp_eq_u64 s[58:59], 0")
    L_noflag = "K2_noflag"
    a.e(f"s_cbranch_scc1 {L_noflag}")
    a.e(f"v_mov_b32 {v(t2)}, {FLAG}")
    a.e(f"v_mov_b32 {v(t3)}, 1")
    a.e(f"ds_write_b32 {v(t2)}, {v(t3)}")
    a.lab(L_noflag)
    a.e("s_waitcnt lgkmcnt(0)")
    a.e("s_barrier")
    a.e(f"v_mov_b32 {v(t2)}, {FLAG}")
    a.e(f"ds_read_b32 {v(t3)}, {v(t2)}")
    a.e("s_waitcnt lgkmcnt(0)")
    a.e(f"v_readfirstlane_b32 s{S_T0}, {v(t3)}")
    a.e(f"s_cmp_eq_u32 s{S_T0}, 0")
    a.e(f"s_cbranch_scc1 {L_ok}")
    a.e(f"s_mov_b32 s{S_MODE}, 1")
    a.e(f"v_cmp_eq_u32 vcc, 1, {v(v_h)}")
    a.e("s_nop 1")
    a.e(f"v_cndmask_b32 {v(Q1)}, {v(Q1raw)}, 0, vcc")
    a.e(f"v_cndmask_b32 {v(Q1+1)}, {v(Q1raw+1)}, 0, vcc")
    a.e(f"v_mov_b32 {v(v_mx)}, 0xff800000")
    a.e(f"s_mov_b32 s{S_KVO}, 0")
    L_mx = "K2_mx"
    a.lab(L_mx)
    a.e(f"buffer_load_dwordx4 {v(K0[0],4)}, {v(v_l16)}, {s(S_KV,4)}, s{S_KVO} offen")
    a.e(f"buffer_load_dwordx2 {v(K1[0],2)}, {v(v_l8)}, {s(S_KV,4)}, s{S_KVO} offen offset:1024")
    a.e("s_waitcnt vmcnt(0)")
    a.e(f"v_mfma_f32_32x32x16_bf16 {v(SS[0],16)}, {v(K0[0],4)}, {v(Q0,4)}, 0")
    a.e(f"v_mfma_f32_32x32x8_bf16 {v(SS[0],16)}, {v(K1[0],2)}, {v(Q1,2)}, {v(SS[0],16)}")
    a.nop(16)
    max16(SS[0], t2)
    a.e(f"v_max_f32 {v(v_mx)}, {v(v_mx)}, {v(t2)}")
    a.e(f"s_add_u32 s{S_KVO}, s{S_KVO}, 4096")
    a.e(f"s_cmp_lt_u32 s{S_KVO}, {64*4096}")
    a.e(f"s_cbranch_scc1 {L_mx}")
    xhalf_max(v_mx)
    set_q1(v_mx)
    a.e("s_barrier")
    a.e(f"s_branch {L_main}")
    a.lab(L_ok)
    a.e(f"v_rcp_f32 {v(v_l)}, {v(v_l)}")
    a.e("s_nop 0")
    for r in range(12):
        a.e(f"v_mul_f32 {v(O+r)}, {v(O+r)}, {v(v_l)}")
    for r in range(6):
        a.e(f"v_cvt_pk_bf16_f32 {v(PP+r)}, {v(O+2*r)}, {v(O+2*r+1)}")
    a.e(f"s_mul_i32 s{S_T0}, s{S_HD}, 5")
    a.e(f"s_mul_i32 s{S_T1}, s{S_QT}, 40960")
    for j in range(3):
        a.e(f"v_add_u32 {v(t0)}, s{S_T0}, {v(v_h)}")
        if j:
            a.e(f"v_add_u32 {v(t0)}, {2*j}, {v(t0)}")
        a.e(f"v_lshrrev_b32 {v(t1)}, 2, {v(t0)}")
        a.e(f"v_lshlrev_b32 {v(t1)}, 10, {v(t1)}")
        a.e(f"v_bfe_u32 {v(t2)}, {v(t0)}, 1, 1")
        a.e(f"v_lshl_add_u32 {v(t1)}, {v(t2)}, 9, {v(t1)}")
        a.e(f"v_and_b32 {v(t2)}, 1, {v(t0)}")
        a.e(f"v_lshl_add_u32 {v(t1)}, {v(t2)}, 3, {v(t1)}")
        a.e(f"v_lshl_add_u32 {v(t1)}, {v(v_m)}, 4, {v(t1)}")
        if j == 2:
            a.e(f"v_cmp_eq_u32 vcc, 0, {v(v_h)}")
            a.e("s_and_saveexec_b64 s[58:59], vcc")
        a.e(f"buffer_store_dwordx2 {v(PP+2*j,2)}, {v(t1)}, {s(S_OS,4)}, s{S_T1} offen")
    stamp_flush(a, 1, P_WS, S_WAVE)
    a.lab(L_end)
    a.e("s_endpgm")
    return name, 256, 512, NBUF * CHB + 64, R.hw, 0


def map_16x10(a):
    a.e("s_and_b32 s3, s2, 7")
    a.e("s_lshl_b32 s3, s3, 1")
    a.e(f"s_lshr_b32 s{S_CG}, s2, 3")
    a.e(f"s_cmp_ge_u32 s{S_CG}, 10")
    a.e(f"s_cselect_b32 s{S_T0}, 10, 0")
    a.e(f"s_cselect_b32 s{S_T1}, 1, 0")
    a.e(f"s_sub_u32 s{S_CG}, s{S_CG}, s{S_T0}")
    a.e(f"s_add_u32 s{S_RB}, s3, s{S_T1}")
    a.e(f"s_lshl_b32 s{S_COL0}, s{S_CG}, 7")


def k35(a, which):
    name = "k3_wo_kernel" if which == 3 else "k5_down_kernel"
    L_end = f"K{which}_end"
    header(a, name)
    load_ptrs(a)
    a.e("s_cmp_ge_u32 s2, 160")
    a.e(f"s_cbranch_scc1 {L_end}")
    R = RegAlloc(1, 256)
    vl = R.get()
    wave_ids(a, vl, 1)
    map_16x10(a)
    a.e(f"s_lshl_b32 s{S_T0}, s{S_RB}, 2")
    a.e(f"s_add_u32 s56, s{S_T0}, s{S_WM}")
    KT = D_ if which == 3 else F_
    a.e("s_waitcnt lgkmcnt(0)")
    pw = P_WO if which == 3 else P_WD
    srd(a, S_WSRD, pw, pw + 1, KT * D_ * 2)
    a.e(f"s_mul_i32 s{S_T0}, s56, {KT*64}")
    a.e(f"s_add_u32 s{S_T0}, s{S_T0}, {WS_O if which == 3 else WS_F}")
    srd_off(a, S_XSRD, P_WS, P_WS + 1, f"s{S_T0}", KT * 64)
    v_tok = R.get(); v_h = R.get(); v_xoff = R.get()
    a.e(f"v_and_b32 {v(v_tok)}, 31, {v(vl)}")
    a.e(f"s_lshl_b32 s{S_T0}, s56, 5")
    a.e(f"v_add_u32 {v(v_tok)}, s{S_T0}, {v(v_tok)}")
    a.e(f"v_lshrrev_b32 {v(v_h)}, 5, {v(vl)}")
    a.e(f"v_lshlrev_b32 {v(v_xoff)}, 4, {v(vl)}")
    c = Cfg()
    c.KT = KT
    if which == 3:
        c.KS, c.NB, c.U = 64, 6, 5
    else:
        c.KS, c.NB, c.U = 64, 6, 4
    c.WM, c.WN, c.T = 4, 1, 2
    c.xorder = 'a' if which == 3 else 'b'
    c.xmode, c.xstride, c.v_xoff, c.x_clamp = 'frag', 1024, v_xoff, False
    c.s_col0, c.v_lane = S_COL0, vl
    c.pitch, c.mode = D_ * 2, 'plain'
    c.swap = [False, False]
    c.hook_w = c.hook_x = None
    res = R.get(16, 4)
    v_ra = R.get()
    a.e(f"v_mul_u32_u24 {v(v_ra)}, {D_*2}, {v(v_tok)}")
    a.e(f"v_lshl_add_u32 {v(v_ra)}, {v(v_h)}, 3, {v(v_ra)}")
    a.e(f"v_add_u32 {v(v_ra)}, s{S_COL0}, {v(v_ra)}")
    a.e(f"s_mul_i32 s{S_T0}, s56, 40960")
    a.e(f"s_lshl_b32 s{S_T1}, s{S_CG}, 12")
    a.e(f"s_add_u32 s{S_T0}, s{S_T0}, s{S_T1}")
    a.e(f"s_add_u32 s{S_T0}, s{S_T0}, {WS_H}")
    srd_off(a, S_E1, P_WS, P_WS + 1, f"s{S_T0}", 4096)
    if which == 3:
        srd(a, S_E0, P_X, P_X + 1, S_TOK * D_ * 2)
        for t in range(2):
            for j in range(4):
                a.e(f"buffer_load_dwordx2 {v(res+8*t+2*j,2)}, {v(v_ra)}, {s(S_E0,4)}, 0 offen offset:{t*64+16*j}")
    else:
        srd(a, S_E0, P_OUT, P_OUT + 1, S_TOK * D_ * 2)
        for q in range(4):
            a.e(f"buffer_load_dwordx4 {v(res+4*q,4)}, {v(v_xoff)}, {s(S_E1,4)}, 0 offen offset:{1024*q}")
    acc = gemm_engine(a, R, c)
    tmp = R.get(16, 4)
    pk = R.get(16, 4)
    for t in range(2):
        for r in range(8):
            a.e(f"v_lshlrev_b32 {v(tmp+2*r)}, 16, {v(res+8*t+r)}")
            a.e(f"v_and_b32 {v(tmp+2*r+1)}, 0xffff0000, {v(res+8*t+r)}")
        for r in range(16):
            a.e(f"v_add_f32 {v(tmp+r)}, {v(tmp+r)}, {v(acc[t]+r)}")
        for r in range(8):
            a.e(f"v_cvt_pk_bf16_f32 {v(pk+8*t+r)}, {v(tmp+2*r)}, {v(tmp+2*r+1)}")
    if which == 3:
        for q in range(4):
            a.e(f"buffer_store_dwordx4 {v(pk+4*q,4)}, {v(v_xoff)}, {s(S_E1,4)}, 0 offen offset:{1024*q}")
        v_ones = R.get(); st = R.get(2, 2); t0 = R.get(); t1 = R.get()
        a.e(f"v_mov_b32 {v(v_ones)}, 0x3f803f80")
        a.e(f"v_mov_b32 {v(st)}, 0")
        a.e(f"v_mov_b32 {v(st+1)}, 0")
        for r in range(16):
            a.e(f"v_dot2_f32_bf16 {v(st)}, {v(pk+r)}, {v(v_ones)}, {v(st)}")
            a.e(f"v_dot2_f32_bf16 {v(st+1)}, {v(pk+r)}, {v(pk+r)}, {v(st+1)}")
        a.e("s_nop 3")
        xhalf_add(a, st, t0, t1)
        xhalf_add(a, st + 1, t0, t1)
        srd_off(a, S_E2, P_WS, P_WS + 1, WS_ST, S_TOK * 80)
        a.e(f"v_mul_u32_u24 {v(t0)}, 80, {v(v_tok)}")
        a.e(f"s_lshl_b32 s{S_T0}, s{S_CG}, 3")
        a.e(f"v_cmp_eq_u32 vcc, 0, {v(v_h)}")
        a.e("s_and_saveexec_b64 s[58:59], vcc")
        a.e(f"buffer_store_dwordx2 {v(st,2)}, {v(t0)}, {s(S_E2,4)}, s{S_T0} offen")
    else:
        for t in range(2):
            for j in range(4):
                a.e(f"buffer_store_dwordx2 {v(pk+8*t+2*j,2)}, {v(v_ra)}, {s(S_E0,4)}, 0 offen offset:{t*64+16*j}")
    stamp_flush(a, which - 1, P_WS, S_WAVE)
    a.lab(L_end)
    a.e("s_endpgm")
    return name, 160, 256, c.lds_bytes, R.hw, c.nagpr


def k4(a):
    name = "k4_ffn_kernel"
    L_end = "K4_end"
    header(a, name)
    load_ptrs(a)
    a.e("s_cmp_ge_u32 s2, 256")
    a.e(f"s_cbranch_scc1 {L_end}")
    R = RegAlloc(1, 256)
    vl = R.get()
    wave_ids(a, vl, 1)
    a.e("s_and_b32 s3, s2, 7")
    a.e(f"s_lshr_b32 s{S_T0}, s2, 3")
    a.e(f"s_lshr_b32 s{S_T1}, s3, 2")
    a.e(f"s_lshl_b32 s{S_T1}, s{S_T1}, 3")
    a.e(f"s_lshr_b32 s{S_RB}, s{S_T0}, 2")
    a.e(f"s_add_u32 s{S_RB}, s{S_RB}, s{S_T1}")
    a.e(f"s_and_b32 s{S_T1}, s3, 3")
    a.e(f"s_lshl_b32 s{S_T1}, s{S_T1}, 2")
    a.e(f"s_and_b32 s{S_CG}, s{S_T0}, 3")
    a.e(f"s_add_u32 s{S_CG}, s{S_CG}, s{S_T1}")
    a.e(f"s_mul_i32 s{S_COL0}, s{S_CG}, 192")
    a.e(f"s_lshl_b32 s{S_T0}, s{S_RB}, 2")
    a.e(f"s_add_u32 s56, s{S_T0}, s{S_WM}")
    a.e("s_waitcnt lgkmcnt(0)")
    a.e(f"s_cmp_ge_u32 s{S_WAVE}, 2")
    a.e(f"s_cselect_b32 s{S_WSRD}, s{P_WU}, s{P_WG}")
    a.e(f"s_cselect_b32 s{S_WSRD+1}, s{P_WU+1}, s{P_WG+1}")
    a.e(f"s_and_b32 s{S_WSRD+1}, s{S_WSRD+1}, 0xffff")
    a.e(f"s_mov_b32 s{S_WSRD+2}, {D_*F_*2}")
    a.e(f"s_mov_b32 s{S_WSRD+3}, 0x00020000")
    a.e(f"s_mul_i32 s{S_T0}, s56, 40960")
    a.e(f"s_add_u32 s{S_T0}, s{S_T0}, {WS_H}")
    srd_off(a, S_XSRD, P_WS, P_WS + 1, f"s{S_T0}", 40960)
    v_tok = R.get(); v_h = R.get(); v_xoff = R.get()
    a.e(f"v_and_b32 {v(v_tok)}, 31, {v(vl)}")
    a.e(f"s_lshl_b32 s{S_T0}, s56, 5")
    a.e(f"v_add_u32 {v(v_tok)}, s{S_T0}, {v(v_tok)}")
    a.e(f"v_lshrrev_b32 {v(v_h)}, 5, {v(vl)}")
    a.e(f"v_lshlrev_b32 {v(v_xoff)}, 4, {v(vl)}")
    stt = R.get(20, 4)
    t0 = R.get(); t1 = R.get()
    c = Cfg()

    def early():
        srd_off(a, S_E3, P_WS, P_WS + 1, WS_CS, 2 * F_ * 4)
        a.e(f"v_cmp_le_u32 vcc, 96, v0")
        a.e(f"v_lshlrev_b32 {v(t0)}, 2, v0")
        a.e(f"v_add_u32 {v(t1)}, {F_*4-384}, {v(t0)}")
        a.e(f"v_cndmask_b32 {v(t0)}, {v(t0)}, {v(t1)}, vcc")
        a.e(f"s_mul_i32 s{S_T0}, s{S_CG}, 384")
        a.e(f"s_lshl_b32 s{S_T1}, s{S_WAVE}, 8")
        a.e(f"s_add_u32 m0, s{S_T1}, {c.lds_bytes}")
        a.e(f"s_cmp_ge_u32 s{S_WAVE}, 3")
        a.e(f"s_cselect_b32 s{S_T0}, 0x40000000, s{S_T0}")
        a.e(f"buffer_load_dword {v(t0)}, {s(S_E3,4)}, s{S_T0} offen lds")

    def pre_loop():
        srd_off(a, S_E2, P_WS, P_WS + 1, WS_ST, S_TOK * 80)
        a.e(f"v_mul_u32_u24 {v(t0)}, 80, {v(v_tok)}")

    srd_off(a, S_E2, P_WS, P_WS + 1, WS_ST, S_TOK * 80)
    a.e(f"v_mul_u32_u24 {v(t0)}, 80, {v(v_tok)}")
    for q in range(5):
        a.e(f"buffer_load_dwordx4 {v(stt+4*q,4)}, {v(t0)}, {s(S_E2,4)}, 0 offen offset:{16*q}")
    a.e("s_nop 0")
    c.early = early
    c.KT, c.KS, c.NB, c.U = D_, 64, 6, 5
    c.WM, c.WN, c.T = 4, 1, 6
    c.xmode, c.x_agpr = 'frag', True
    c.xorder, c.xstride, c.v_xoff, c.x_clamp = 'b', 1024, v_xoff, False
    c.s_col0, c.v_lane = S_COL0, vl
    c.pitch, c.mode = F_ * 2, 'split'
    c.swap = [False] * 6
    c.hook_w = c.hook_x = None
    acc = gemm_engine(a, R, c)
    v_mu = R.get(); v_rs = R.get(); v_ca = R.get()
    csr = [R.get(16, 4), R.get(16, 4)]
    a.e(f"v_lshlrev_b32 {v(v_ca)}, 4, {v(v_h)}")
    a.e(f"v_add_u32 {v(v_ca)}, {c.lds_bytes}, {v(v_ca)}")

    def rd_cs(t):
        cs = csr[t % 2]
        for jj in range(2):
            a.e(f"ds_read_b128 {v(cs+4*jj,4)}, {v(v_ca)} offset:{64*t+32*jj}")
            a.e(f"ds_read_b128 {v(cs+8+4*jj,4)}, {v(v_ca)} offset:{384+64*t+32*jj}")

    rd_cs(0)
    for q in range(1, 10):
        a.e(f"v_add_f32 {v(stt)}, {v(stt)}, {v(stt+2*q)}")
        a.e(f"v_add_f32 {v(stt+1)}, {v(stt+1)}, {v(stt+2*q+1)}")
    ln_stats(a, stt, stt + 1, v_mu, v_rs, t0)
    a.e(f"s_mul_i32 s{S_T0}, s56, {F_*64}")
    a.e(f"s_mul_i32 s{S_T1}, s{S_CG}, 6144")
    a.e(f"s_add_u32 s{S_T0}, s{S_T0}, s{S_T1}")
    a.e(f"s_add_u32 s{S_T0}, s{S_T0}, {WS_F}")
    srd_off(a, S_E0, P_WS, P_WS + 1, f"s{S_T0}", 6144)
    C1 = -2.0 * math.sqrt(2.0 / math.pi) * math.log2(math.e)
    C2 = C1 * 0.044715
    a.e(f"s_mov_b32 s{S_T0}, {f32(C1)}")
    a.e(f"s_mov_b32 s{S_T1}, {f32(C2)}")
    a.e(f"s_mov_b32 s{S_T2}, 2048")
    w = R.get(8, 4)
    pk = [R.get(4, 4), R.get(4, 4)]
    vc1 = R.get()
    a.e(f"v_mov_b32 {v(vc1)}, s{S_T0}")
    for t in range(6):
        cs = csr[t % 2]
        a.e("s_waitcnt lgkmcnt(0)")
        if t + 1 < 6:
            rd_cs(t + 1)
        for r in range(16):
            a.e(f"v_fma_f32 {v(cs+r)}, {v(v_mu)}, {v(cs+r)}, {v(acc[t]+r)}")
            a.e(f"v_mul_f32 {v(cs+r)}, {v(v_rs)}, {v(cs+r)}")
        for r in range(8):
            a.e(f"v_mul_f32 {v(w+r)}, {v(cs+r)}, {v(cs+r)}")
            a.e(f"v_fma_f32 {v(w+r)}, {v(w+r)}, s{S_T1}, {v(vc1)}")
            a.e(f"v_mul_f32 {v(w+r)}, {v(w+r)}, {v(cs+r)}")
        for r in range(8):
            a.e(f"v_exp_f32 {v(w+r)}, {v(w+r)}")
        a.e("s_nop 0")
        for r in range(8):
            a.e(f"v_add_f32 {v(w+r)}, 1.0, {v(w+r)}")
        for r in range(8):
            a.e(f"v_rcp_f32 {v(w+r)}, {v(w+r)}")
        a.e("s_nop 0")
        for r in range(8):
            a.e(f"v_mul_f32 {v(w+r)}, {v(w+r)}, {v(cs+r)}")
            a.e(f"v_mul_f32 {v(w+r)}, {v(w+r)}, {v(cs+8+r)}")
        for r in range(4):
            a.e(f"v_cvt_pk_bf16_f32 {v(pk[t%2]+r)}, {v(w+2*r)}, {v(w+2*r+1)}")
        so = "0" if t < 4 else f"s{S_T2}"
        a.e(f"buffer_store_dwordx4 {v(pk[t%2],4)}, {v(v_xoff)}, {s(S_E0,4)}, {so} offen offset:{1024*(t if t < 4 else t-2)}")
    stamp_flush(a, 3, P_WS, S_WAVE)
    a.lab(L_end)
    a.e("s_endpgm")
    return name, 256, 256, c.lds_bytes + 1024, R.hw, c.nagpr


def main():
    ref = open(os.path.join(os.path.dirname(os.path.abspath(__file__)), "..", "cdna_kernels", NAME + ".s.ref")).read()
    head = [l for l in ref.splitlines() if l.startswith(";") and "@launch" not in l and "Override" not in l
            and "grid=ceil" not in l]
    a = Asm()
    ks = []
    ks.append(k1(a))
    ks.append(k2(a))
    ks.append(k35(a, 3))
    ks.append(k4(a))
    ks.append(k35(a, 5))
    out = "\n".join(head) + "\n"
    for (n, g, b, lds, nv, na) in ks:
        out += f"; @launch kernel={n} grid=({g},1,1) block=({b},1,1) lds={lds}\n"
    out += '.amdgcn_target "amdgcn-amd-amdhsa--gfx950"\n.text\n'
    out += a.text()
    out += '.section .rodata,"a"\n'
    for (n, g, b, lds, nv, na) in ks:
        out += kernel_desc(n, nv, nagpr=na)
        print(f"{n}: grid={g} block={b} lds={lds} vgpr={nv} agpr={na}", file=sys.stderr)
    dst = sys.argv[1] if len(sys.argv) > 1 else os.path.join(os.path.dirname(os.path.abspath(__file__)), "..", "cdna_kernels", NAME + ".s")
    open(dst, "w").write(out)


if __name__ == "__main__":
    main()
```
